```python
import torch

def _softmax(x, axis=-1):
    return torch.softmax(x, dim=axis)
def _gelu(x):
    return torch.nn.functional.gelu(x, approximate="tanh")
def _silu(x):
    return torch.nn.functional.silu(x)
def _sigmoid(x):
    return torch.sigmoid(x)
def _layernorm(x, axis=-1, eps=1e-5):
    m = x.mean(dim=axis, keepdim=True)
    v = x.var(dim=axis, keepdim=True, unbiased=False)
    return (x - m) / torch.sqrt(v + eps)
def _scatter_add(tgt, idx, src, axis=0):
    return tgt.clone().index_add_(axis, idx, src)
def _segment_sum(src, seg, n):
    out = torch.zeros((n,) + src.shape[1:], dtype=src.dtype)
    return out.index_add_(0, seg, src)
def _pad(x, pw):
    flat = tuple(v for pair in reversed(pw) for v in pair)
    return torch.nn.functional.pad(x, flat)

kernel_name = 'interleave_layers__spectral_gfnet__spectral_gfnet__prompt'

def setup_inputs():

    _w = (lambda a: (lambda t: t.to(torch.bfloat16) if t.is_floating_point() else t)(torch.as_tensor(a)))
    def _A_setup():
        B, S, D = 1, 2048, 1024
        Df = D // 2 + 1
        return {
            "x": _w((lambda *s: torch.randn(*s, dtype=torch.bfloat16) * 0.05)(B, S, D)),
            "w_r": _w((lambda *s: torch.randn(*s, dtype=torch.bfloat16) * 0.2)(S, Df) * 0.02),
            "w_i": _w((lambda *s: torch.randn(*s, dtype=torch.bfloat16) * 0.2)(S, Df) * 0.02),
        }
    _A_in = _A_setup()

    def _B_setup():
        B, S, D = 1, 2048, 1024
        Df = D // 2 + 1
        return {
            "x": _w((lambda *s: torch.randn(*s, dtype=torch.bfloat16) * 0.05)(B, S, D)),
            "w_r": _w((lambda *s: torch.randn(*s, dtype=torch.bfloat16) * 0.2)(S, Df) * 0.02),
            "w_i": _w((lambda *s: torch.randn(*s, dtype=torch.bfloat16) * 0.2)(S, Df) * 0.02),
        }
    _B_in = _B_setup()

    return {
        "A_x": _A_in["x"],
        "A_w_r": _A_in["w_r"],
        "A_w_i": _A_in["w_i"],
        "B_x": _B_in["x"],
        "B_w_r": _B_in["w_r"],
        "B_w_i": _B_in["w_i"],
    }

def reference(A_x, A_w_r, A_w_i, B_x, B_w_r, B_w_i):
    def _A_ref(x, w_r, w_i):
        B, S, D = x.shape
        X = (lambda x, axes=(-2,-1): torch.fft.rfft2(x.float(), dim=axes))(x, axes=(-2, -1))
        W = w_r + 1j * w_i
        X = X * W
        y = (lambda x, s, axes=(-2,-1): torch.fft.irfft2(x, s=s, dim=axes).to(torch.bfloat16))(X, (S, D), axes=(-2, -1))
        return y

    def _B_ref(x, w_r, w_i):
        B, S, D = x.shape
        X = (lambda x, axes=(-2,-1): torch.fft.rfft2(x.float(), dim=axes))(x, axes=(-2, -1))
        W = w_r + 1j * w_i
        X = X * W
        y = (lambda x, s, axes=(-2,-1): torch.fft.irfft2(x, s=s, dim=axes).to(torch.bfloat16))(X, (S, D), axes=(-2, -1))
        return y

    x = A_x
    x = x + _A_ref(_layernorm(x, axis=-1), A_w_r, A_w_i)
    x = x + _B_ref(_layernorm(x, axis=-1), B_w_r, B_w_i)
    x = x + _A_ref(_layernorm(x, axis=-1), A_w_r, A_w_i)
    x = x + _B_ref(_layernorm(x, axis=-1), B_w_r, B_w_i)
    return x
```

```python
import re
import struct

TRANS = ("v_exp_f32", "v_log_f32", "v_rcp_f32", "v_rsq_f32", "v_sqrt_f32", "v_sin_f32", "v_cos_f32",
         "v_rcp_iflag_f32", "v_exp_f16", "v_log_f16", "v_rcp_f16", "v_rsq_f16", "v_sqrt_f16", "v_sin_f16", "v_cos_f16")


def f2u(x):
    return struct.unpack("<I", struct.pack("<f", x))[0]


def hexf(x):
    return "0x%08x" % f2u(x)


def split_ops(s):
    out, depth, cur = [], 0, ""
    for ch in s:
        if ch in "[(":
            depth += 1
        elif ch in "])":
            depth -= 1
        if ch == "," and depth == 0:
            out.append(cur.strip())
            cur = ""
        else:
            cur += ch
    if cur.strip():
        out.append(cur.strip())
    return out


_reg_re = re.compile(r"^(v|a|s)(\d+)$")
_rng_re = re.compile(r"^(v|a|s)\[(\d+):(\d+)\]$")


def regs_of(tok):
    t = tok.strip()
    t = t.lstrip("-")
    if t.startswith("|") and t.endswith("|"):
        t = t[1:-1]
    if t.startswith("abs(") and t.endswith(")"):
        t = t[4:-1]
    m = _reg_re.match(t)
    if m:
        return [(m.group(1), int(m.group(2)))]
    m = _rng_re.match(t)
    if m:
        return [(m.group(1), i) for i in range(int(m.group(2)), int(m.group(3)) + 1)]
    if t == "vcc":
        return [("s", 106), ("s", 107)]
    if t == "vcc_lo":
        return [("s", 106)]
    if t == "vcc_hi":
        return [("s", 107)]
    if t == "exec":
        return [("s", 126), ("s", 127)]
    if t == "m0":
        return [("s", 124)]
    return []


class Inst:
    def __init__(self, text):
        self.text = text
        body = text.split(";")[0].strip()
        parts = body.split(None, 1)
        self.op = parts[0]
        rest = parts[1] if len(parts) > 1 else ""
        ops = split_ops(rest)
        self.mods = ""
        if ops:
            last = ops[-1].split(None, 1)
            ops[-1] = last[0]
            self.mods = last[1] if len(last) > 1 else ""
        self.ops = ops
        op = self.op
        self.w = []
        self.r = []
        self.kind = "other"
        self.passes = 0
        self.srcc = []
        self.srcab = []
        R = [regs_of(o) for o in ops]
        if op.startswith("v_mfma"):
            self.kind = "mfma"
            self.w = R[0]
            self.srcab = R[1] + R[2]
            self.srcc = R[3]
            self.r = self.srcab + self.srcc
            if "32x32x16" in op or "32x32x8" in op:
                self.passes = 8
            elif "16x16x32" in op or "16x16x16" in op:
                self.passes = 4
            else:
                raise ValueError("unknown mfma " + op)
        elif op.startswith("v_"):
            self.kind = "valu"
            if op.startswith("v_cmp"):
                self.w = R[0]
                self.r = sum(R[1:], [])
            elif op.startswith("v_readlane") or op.startswith("v_readfirstlane"):
                self.w = R[0]
                self.r = sum(R[1:], [])
            elif op.startswith("v_permlane") and "swap" in op:
                self.w = R[0] + R[1]
                self.r = R[0] + R[1]
            elif op.startswith(("v_add_co", "v_sub_co", "v_addc_co", "v_subb_co", "v_subrev_co")):
                self.w = R[0] + R[1]
                self.r = sum(R[2:], [])
            elif op == "v_nop":
                pass
            else:
                self.w = R[0]
                self.r = sum(R[1:], [])
                if op.startswith(("v_fmac", "v_fma_mixlo", "v_fma_mixhi", "v_dot2c", "v_pk_fmac", "v_writelane")) or "dpp" in op:
                    self.r = self.r + R[0]
        elif op.startswith("ds_"):
            self.kind = "ds"
            if op.startswith(("ds_read", "ds_bpermute", "ds_permute", "ds_swizzle")):
                self.w = R[0]
                self.r = sum(R[1:], [])
            else:
                self.r = sum(R, [])
        elif op.startswith(("buffer_", "global_")):
            self.kind = "vmem"
            if "_load" in op and " lds" not in (" " + self.mods) and "_lds_" not in op:
                self.w = R[0]
                self.r = sum(R[1:], [])
            else:
                self.r = sum(R, [])
            self.wide_store = ("store_dwordx4" in op or "store_dwordx3" in op)
            if self.wide_store:
                self.sdata = R[0] if op.startswith("buffer_") else R[1]
        elif op.startswith("s_"):
            self.kind = "salu"
            if op.startswith(("s_cmp", "s_bitcmp", "s_waitcnt", "s_nop", "s_barrier", "s_branch", "s_cbranch", "s_endpgm",
                              "s_sleep", "s_setprio")):
                self.r = sum(R, [])
            else:
                self.w = R[0] if R else []
                self.r = sum(R[1:], [])
        self.is_trans = op.replace("_e32", "").replace("_e64", "") in TRANS
        self.is_dpp = "dpp" in op
        self.is_mix = op.startswith(("v_fma_mixlo", "v_fma_mixhi"))
        self.is_perml = op.startswith("v_permlane")
        self.is_rdlane = op.startswith(("v_readlane", "v_readfirstlane"))

    def states(self):
        if self.op == "s_nop":
            return int(self.ops[0], 0) + 1
        return 1


def need(p, c):
    n = 0
    pw, pr, cw, cr = set(p.w), set(p.r), set(c.w), set(c.r)
    pwv = {x for x in pw if x[0] in "va"}
    pws = {x for x in pw if x[0] == "s"}
    if p.kind == "valu":
        if c.kind == "mfma" and pwv & cr:
            n = max(n, 2)
        if p.is_trans and pwv & (cr | cw) and c.kind in ("valu", "vmem", "ds", "mfma"):
            n = max(n, 1)
        if c.is_dpp and pwv & cr:
            n = max(n, 2)
        if c.is_rdlane and pwv & cr:
            n = max(n, 1)
        if c.is_perml and pwv & cr:
            n = max(n, 2)
        if p.is_mix and pwv & (cr | cw) and c.kind in ("valu", "vmem", "ds"):
            n = max(n, 1)
        if pws & cr:
            if c.kind == "valu":
                n = max(n, 4 if c.is_rdlane or c.op.startswith("v_writelane") else 2)
            elif c.kind == "vmem":
                n = max(n, 5)
            elif c.kind == "salu":
                n = max(n, 1)
    if p.kind == "mfma":
        big = 12 if p.passes == 8 else 8
        if c.kind == "mfma":
            if pw & set(c.srcab):
                n = max(n, big)
            if pw & set(c.srcc):
                if p.w == c.srcc and p.passes == c.passes:
                    pass
                else:
                    n = max(n, big - 2)
            elif pw & cw:
                n = max(n, big - 2)
        elif c.kind in ("valu", "vmem", "ds"):
            if pw & (cr | cw):
                n = max(n, big)
            if c.kind == "valu" and set(p.srcc) & cw:
                n = max(n, 7 if p.passes == 8 else 3)
    if p.kind == "vmem" and getattr(p, "wide_store", False):
        if set(p.sdata) & cw:
            n = max(n, 2)
    if p.kind == "salu" and ("s", 124) in pw and c.kind == "vmem":
        n = max(n, 1)
    return n


class Asm:
    def __init__(self):
        self.lines = []
        self.hist = []
        self.pos = 0
        self.nops = 0
        self.count = 0

    def raw(self, text):
        self.lines.append(text)

    def comment(self, text):
        self.lines.append("    ; " + text)

    def _pad(self, n):
        while n > 0:
            k = min(n, 16)
            self.lines.append("    s_nop %d" % (k - 1))
            self.pos += k
            self.nops += k
            n -= k

    def __call__(self, text):
        for t in text.strip().split("\n"):
            t = t.strip()
            if not t or t.startswith(";"):
                continue
            self.emit(t)

    def emit(self, text):
        ins = Inst(text)
        req = 0
        for (pp, p) in self.hist:
            dist = self.pos - pp - 1
            n = need(p, ins)
            if n > dist:
                req = max(req, n - dist)
        if req:
            self._pad(req)
        self.lines.append("    " + text)
        st = ins.states()
        self.hist.append((self.pos + st - 1, ins))
        self.pos += st
        self.count += 1
        self.hist = [(pp, p) for (pp, p) in self.hist if self.pos - pp <= 14]

    def flush(self):
        req = 0
        for (pp, p) in self.hist:
            dist = self.pos - pp - 1
            if p.kind == "mfma":
                n = 12 if p.passes == 8 else 8
            elif p.kind == "valu":
                n = 5 if any(x[0] == "s" for x in p.w) else 2
            elif p.kind == "vmem" and getattr(p, "wide_store", False):
                n = 2
            else:
                n = 0
            req = max(req, n - dist)
        if req > 0:
            self._pad(req)
        self.hist = []

    def label(self, name):
        self.flush()
        self.lines.append(name + ":")

    def branch(self, text):
        self.flush()
        self.emit(text)

    def text(self):
        return "\n".join(self.lines) + "\n"


def vr(base, n):
    return "v[%d:%d]" % (base, base + n - 1)


def sr(base, n):
    return "s[%d:%d]" % (base, base + n - 1)
```

```python
import sys
from asmlib import Asm, vr, sr, hexf, f2u

MB = 1 << 20
NBUF = 0
WBUF = 4 * MB
DBUF = 12 * MB
PART = 16 * MB
AVEC = 17 * MB
INVA = 17 * MB + 65536
SIG = INVA + 8192
CSC = SIG + 1024
WS_BYTES = 268435456
XBYTES = 4194304
WBYTES = 2048 * 513 * 2
EPS = 1e-5
SPIN_MAX = 20000

D1 = 24
D2 = 16


def kidx(r):
    return 8 * (r // 4) + r % 4


def srd(a, sbase, sptr, nbytes):
    a("s_mov_b32 s%d, s%d" % (sbase, sptr))
    a("s_and_b32 s%d, s%d, 0xffff" % (sbase + 1, sptr + 1))
    a("s_mov_b32 s%d, 0x%x" % (sbase + 2, nbytes))
    a("s_mov_b32 s%d, 0x00020000" % (sbase + 3))


def angle(a, dst, vf, vbase, k):
    if k == 0:
        a("v_mov_b32 v%d, v%d" % (dst, vbase))
    else:
        a("v_fmamk_f32 v%d, v%d, %s, v%d" % (dst, vf, hexf(k), vbase))


def cmul_ops(dst, x, w):
    return ["v_pk_mul_f16 v%d, v%d, v%d op_sel:[0,0] op_sel_hi:[1,0]" % (dst, x, w),
            "v_pk_fma_f16 v%d, v%d, v%d, v%d op_sel:[1,1,0] op_sel_hi:[0,1,1] neg_lo:[1,0,0]" % (dst, x, w, dst)]


def wave_allreduce(a, op, regs, tmps):
    for ctl in ("quad_perm:[1,0,3,2]", "quad_perm:[2,3,0,1]", "row_half_mirror", "row_mirror"):
        for r in regs:
            a("%s_dpp v%d, v%d, v%d %s row_mask:0xf bank_mask:0xf" % (op, r, r, r, ctl))
    for sw in ("v_permlane16_swap_b32", "v_permlane32_swap_b32"):
        for r, t in zip(regs, tmps):
            a("v_mov_b32 v%d, v%d" % (t, r))
        for r, t in zip(regs, tmps):
            a("%s v%d, v%d" % (sw, r, t))
        for r, t in zip(regs, tmps):
            a("%s v%d, v%d, v%d" % (op, r, r, t))


def interleave(a, valu, mfmas):
    mi = 0
    for i, v in enumerate(valu):
        while mi < len(mfmas) and mfmas[mi][0] <= i:
            a(mfmas[mi][1])
            mi += 1
        a(v)
    while mi < len(mfmas):
        a(mfmas[mi][1])
        mi += 1


def kernel_header(a, name):
    a.raw(".globl %s" % name)
    a.raw(".p2align 8")
    a.raw(".type %s,@function" % name)
    a.raw("%s:" % name)
    a.hist = []


def descriptor(name, nv, ns=102):
    acc = (nv + 3) // 4 * 4
    return """.amdhsa_kernel %s
  .amdhsa_next_free_vgpr %d
  .amdhsa_next_free_sgpr %d
  .amdhsa_accum_offset %d
  .amdhsa_group_segment_fixed_size 0
  .amdhsa_kernarg_size 72
  .amdhsa_user_sgpr_count 2
  .amdhsa_user_sgpr_kernarg_segment_ptr 1
  .amdhsa_system_sgpr_workgroup_id_x 1
.end_amdhsa_kernel
""" % (name, nv, ns, acc)


def gen_k0(a):
    kernel_header(a, "k0_kernel")
    a("s_cmp_ge_u32 s2, 512")
    a.branch("s_cbranch_scc1 K0_END")
    a("s_load_dwordx2 s[4:5], s[0:1], 64")
    a("s_load_dwordx2 s[6:7], s[0:1], 0")
    a("s_load_dwordx4 s[36:39], s[0:1], 8")
    a("s_load_dwordx4 s[40:43], s[0:1], 32")
    a("v_and_b32 v1, 63, v0")
    a("v_lshrrev_b32 v5, 6, v0")
    a("v_and_b32 v2, 31, v0")
    a("v_readfirstlane_b32 s3, v5")
    a("v_lshrrev_b32 v3, 5, v1")
    a("s_waitcnt lgkmcnt(0)")
    srd(a, 8, 4, WS_BYTES)
    a("s_cmp_ge_u32 s2, 256")
    a.branch("s_cbranch_scc1 K0_W")
    srd(a, 12, 6, XBYTES)
    a("s_lshr_b32 s16, s2, 4")
    a("s_and_b32 s16, s16, 7")
    a("s_lshl_b32 s16, s16, 8")
    a("s_lshl_b32 s17, s3, 6")
    a("s_add_u32 s16, s16, s17")
    a("s_and_b32 s17, s2, 15")
    a("s_lshl_b32 s17, s17, 2")
    a("s_add_u32 s16, s16, s17")
    a("s_lshr_b32 s17, s2, 7")
    a("s_add_u32 s16, s16, s17")
    a("s_lshl_b32 s16, s16, 11")
    a("s_add_u32 s17, s16, 4096")
    a("v_lshlrev_b32 v5, 6, v2")
    a("v_lshl_add_u32 v5, v3, 4, v5")
    XL = 8
    a("buffer_load_dwordx4 %s, v5, s[12:15], s16 offen" % vr(XL, 4))
    a("buffer_load_dwordx4 %s, v5, s[12:15], s16 offen offset:32" % vr(XL + 4, 4))
    a("buffer_load_dwordx4 %s, v5, s[12:15], s17 offen" % vr(XL + 8, 4))
    a("buffer_load_dwordx4 %s, v5, s[12:15], s17 offen offset:32" % vr(XL + 12, 4))
    T = 224
    for q in range(4):
        a("v_mov_b32 v%d, 0" % (T + q))
    a("v_lshlrev_b32 v6, 4, v0")
    a("s_lshl_b32 s18, s2, 12")
    a("s_add_u32 s18, s18, 0x%x" % PART)
    a("buffer_store_dwordx4 %s, v6, s[8:11], s18 offen" % vr(T, 4))
    a("s_lshl_b32 s18, s2, 8")
    a("s_add_u32 s18, s18, 0x%x" % AVEC)
    a("v_cmp_gt_u32 vcc, 16, v0")
    a("s_and_saveexec_b64 s[20:21], vcc")
    a.branch("s_cbranch_execz K0X_NOCLR")
    a("buffer_store_dwordx4 %s, v6, s[8:11], s18 offen" % vr(T, 4))
    a.label("K0X_NOCLR")
    a("s_mov_b64 exec, -1")
    ID, C1, S1, TW, M2 = 24, 32, 40, 48, 64
    a("v_cvt_f32_u32 v4, v2")
    a("v_cvt_f32_u32 v7, v3")
    a("v_lshrrev_b32 v%d, 1, v2" % (T + 4))
    a("v_lshlrev_b32 v%d, 2, v3" % (T + 5))
    a("v_sub_u32 v%d, v%d, v%d" % (T + 4, T + 4, T + 5))
    a("v_and_b32 v%d, 1, v2" % (T + 5))
    a("v_lshlrev_b32 v%d, 4, v%d" % (T + 5, T + 5))
    a("v_mov_b32 v%d, 0x3f80" % (T + 6))
    a("v_lshlrev_b32 v%d, v%d, v%d" % (T + 6, T + 5, T + 6))
    for t in range(2):
        for q in range(4):
            a("v_cmp_eq_u32 vcc, %d, v%d" % (8 * t + q, T + 4))
            a("v_cndmask_b32 v%d, 0, v%d, vcc" % (ID + 4 * t + q, T + 6))
    a("v_mul_f32 v%d, v4, v7" % (T + 4))
    a("v_mul_f32 v%d, 0.125, v%d" % (T + 4, T + 4) if False else "v_mul_f32 v%d, %s, v%d" % (T + 4, hexf(0.125), T + 4))
    for q in range(8):
        for u in range(2):
            r = 2 * q + u
            angle(a, T + 8 + u, 4, T + 4, kidx(r) / 32.0)
            a("v_fract_f32 v%d, v%d" % (T + 8 + u, T + 8 + u))
            a("v_cos_f32 v%d, v%d" % (T + 10 + u, T + 8 + u))
            a("v_sin_f32 v%d, v%d" % (T + 12 + u, T + 8 + u))
        a("v_cvt_pk_bf16_f32 v%d, v%d, v%d" % (C1 + q, T + 10, T + 11))
        a("v_cvt_pk_bf16_f32 v%d, -v%d, -v%d" % (S1 + q, T + 12, T + 13))
    a("v_cmp_eq_u32 vcc, 0, v2")
    a("v_mov_b32 v%d, 0x42000000" % (T + 5))
    a("v_cndmask_b32 v%d, v4, v%d, vcc" % (T + 5, T + 5))
    a("v_mov_b32 v%d, %s" % (T + 7, hexf(1.0 / 32)))
    a("v_cndmask_b32 v%d, 0, v%d, vcc" % (T + 7, T + 7))
    a("v_mul_f32 v%d, v%d, v7" % (T + 4, T + 5))
    a("v_mul_f32 v%d, %s, v%d" % (T + 4, hexf(4.0 / 1024), T + 4))
    a("s_mov_b32 s19, %s" % hexf(1.0 / 32))
    for r in range(16):
        u = r & 1
        angle(a, T + 8 + u, T + 5, T + 4, kidx(r) / 1024.0)
        a("v_cos_f32 v%d, v%d" % (T + 10 + u, T + 8 + u))
        a("v_sin_f32 v%d, v%d" % (T + 12 + u, T + 8 + u))
        a("v_fma_mixlo_f16 v%d, v%d, s19, 0" % (TW + r, T + 10 + u))
        a("v_fma_mixhi_f16 v%d, -v%d, s19, 0" % (TW + r, T + 12 + u))
    a("v_bfe_u32 v%d, v2, 2, 1" % (T + 4))
    a("v_lshlrev_b32 v%d, 3, v%d" % (T + 4, T + 4))
    a("v_lshrrev_b32 v%d, 3, v2" % (T + 5))
    a("v_lshl_add_u32 v%d, v%d, 1, v%d" % (T + 4, T + 5, T + 4))
    a("v_bfe_u32 v%d, v2, 1, 1" % (T + 5))
    a("v_add_u32 v%d, v%d, v%d" % (T + 4, T + 4, T + 5))
    a("v_cvt_f32_u32 v%d, v%d" % (T + 5, T + 4))
    a("v_and_b32 v%d, 1, v2" % (T + 4))
    a("v_cvt_f32_u32 v%d, v%d" % (T + 4, T + 4))
    a("v_mul_f32 v%d, %s, v%d" % (T + 4, hexf(0.25), T + 4))
    a("v_mul_f32 v%d, v%d, v7" % (T + 6, T + 5))
    a("v_fmamk_f32 v%d, v%d, %s, v%d" % (T + 4, T + 6, hexf(0.125), T + 4))
    for r in range(16):
        u = r & 1
        angle(a, T + 8 + u, T + 5, T + 4, kidx(r) / 32.0)
        a("v_fract_f32 v%d, v%d" % (T + 8 + u, T + 8 + u))
        a("v_cos_f32 v%d, v%d" % (T + 10 + u, T + 8 + u))
        a("v_sin_f32 v%d, v%d" % (T + 12 + u, T + 8 + u))
        a("v_cvt_pk_f16_f32 v%d, v%d, v%d" % (M2 + r, T + 10 + u, T + 12 + u))
    D0 = [80, 152]
    XA = [96, 168]
    TR = [104, 176]
    TI = [120, 192]
    OP = [136, 208]
    a("s_waitcnt vmcnt(0)")
    for e in range(2):
        a("v_mfma_f32_32x32x16_bf16 %s, %s, %s, 0" % (vr(D0[e], 16), vr(XL + 8 * e, 4), vr(ID, 4)))
        a("v_mfma_f32_32x32x16_bf16 %s, %s, %s, %s" % (vr(D0[e], 16), vr(XL + 8 * e + 4, 4), vr(ID + 4, 4), vr(D0[e], 16)))
    for e in range(2):
        for q in range(8):
            a("v_cvt_pk_bf16_f32 v%d, v%d, v%d" % (XA[e] + q, D0[e] + 2 * q, D0[e] + 2 * q + 1))
        for t in range(2):
            c = "0" if t == 0 else vr(TR[e], 16)
            a("v_mfma_f32_32x32x16_bf16 %s, %s, %s, %s" % (vr(TR[e], 16), vr(XA[e] + 4 * t, 4), vr(C1 + 4 * t, 4), c))
            c = "0" if t == 0 else vr(TI[e], 16)
            a("v_mfma_f32_32x32x16_bf16 %s, %s, %s, %s" % (vr(TI[e], 16), vr(XA[e] + 4 * t, 4), vr(S1 + 4 * t, 4), c))
    SM = [T + 8, T + 9]
    SX = [T + 10, T + 11]
    for e in range(2):
        a("v_add_f32 v%d, v%d, v%d" % (SM[e], TR[e], TR[e] + 1))
        a("v_add_f32 v%d, v%d, v%d" % (SX[e], TR[e] + 2, TR[e] + 3))
        for r in range(4, 16, 2):
            a("v_add_f32 v%d, v%d, v%d" % (SM[e], SM[e], TR[e] + r))
            a("v_add_f32 v%d, v%d, v%d" % (SX[e], SX[e], TR[e] + r + 1))
        a("v_add_f32 v%d, v%d, v%d" % (SM[e], SM[e], SX[e]))
    for e in range(2):
        a("v_mov_b32 v%d, v%d" % (SX[e], SM[e]))
    for e in range(2):
        a("v_permlane32_swap_b32 v%d, v%d" % (SM[e], SX[e]))
    for e in range(2):
        a("v_add_f32 v%d, v%d, v%d" % (SM[e], SM[e], SX[e]))
        a("v_mul_f32 v%d, v%d, v%d" % (SM[e], SM[e], T + 7))
    for e in range(2):
        for r in range(16):
            a("v_sub_f32 v%d, v%d, v%d" % (TR[e] + r, TR[e] + r, SM[e]))
    for e in range(2):
        a("v_mul_f32 v%d, v%d, v%d" % (SM[e], TR[e], TR[e]))
        a("v_mul_f32 v%d, v%d, v%d" % (SX[e], TI[e], TI[e]))
        for r in range(1, 16):
            a("v_fmac_f32 v%d, v%d, v%d" % (SM[e], TR[e] + r, TR[e] + r))
            a("v_fmac_f32 v%d, v%d, v%d" % (SX[e], TI[e] + r, TI[e] + r))
        a("v_add_f32 v%d, v%d, v%d" % (SM[e], SM[e], SX[e]))
    wave_allreduce(a, "v_add_f32", SM, SX)
    AS = [T + 12, T + 13]
    a("v_mov_b32 v%d, %s" % (T + 14, hexf(EPS)))
    for e in range(2):
        a("v_fmamk_f32 v%d, v%d, %s, v%d" % (SM[e], SM[e], hexf(2.0 ** -15), T + 14))
        a("v_rsq_f32 v%d, v%d" % (AS[e], SM[e]))
    for e in range(2):
        a("v_mul_f32 v%d, v%d, v%d" % (SM[e], SM[e], AS[e]))
        a("v_mul_f32 v%d, %s, v%d" % (SM[e], hexf(32.0), SM[e]))
    for e in range(2):
        valu = []
        for t in range(4):
            for p in range(4):
                r = 4 * t + p
                valu.append("v_fma_mixlo_f16 v%d, v%d, v%d, 0" % (TR[e] + r, TR[e] + r, AS[e]))
            for p in range(4):
                r = 4 * t + p
                valu.append("v_fma_mixhi_f16 v%d, v%d, v%d, 0" % (TR[e] + r, TI[e] + r, AS[e]))
            ops = [cmul_ops(OP[e] + 4 * t + p, TR[e] + 4 * t + p, TW + 4 * t + p) for p in range(4)]
            valu += [o[0] for o in ops] + [o[1] for o in ops]
        mf = []
        for t in range(4):
            c = "0" if t == 0 else vr(D0[e], 16)
            mf.append((16 * (t + 1) + 2, "v_mfma_f32_32x32x16_f16 %s, %s, %s, %s" % (vr(D0[e], 16), vr(M2 + 4 * t, 4), vr(OP[e] + 4 * t, 4), c)))
        interleave(a, valu, mf)
    a("v_cmp_eq_u32 vcc, 0, v1")
    a("v_cndmask_b32 v%d, v%d, v%d, vcc" % (SX[0], SM[1], SM[0]))
    a("v_lshlrev_b32 v%d, 4, v1" % (SX[1]))
    a("s_lshl_b32 s18, s2, 5")
    a("s_lshl_b32 s19, s3, 2")
    a("s_add_u32 s18, s18, s19")
    a("s_add_u32 s18, s18, 0x%x" % INVA)
    a("s_mov_b64 exec, 3")
    a("buffer_store_dword v%d, v%d, s[8:11], s18 offen" % (SX[0], SX[1]))
    a("s_mov_b64 exec, -1")
    a("s_lshl_b32 s18, s3, 11")
    a("v_lshlrev_b32 v5, 4, v1")
    a("v_add_u32 v5, s18, v5")
    for e in range(2):
        for q in range(8):
            a("v_cvt_pk_f16_f32 v%d, v%d, v%d" % (XA[e] + q, D0[e] + 2 * q, D0[e] + 2 * q + 1))
        for t in range(2):
            a("ds_write_b128 v5, %s offset:%d" % (vr(XA[e] + 4 * t, 4), e * (8192 + 64) + t * 1024))
    a("v_and_b32 v6, 1, v0")
    a("v_mul_u32_u24 v6, %d, v6" % (8192 + 64))
    a("v_lshrrev_b32 v7, 1, v0")
    a("v_lshl_add_u32 v6, v7, 2, v6")
    a("v_lshrrev_b32 v7, 2, v0")
    a("v_lshlrev_b32 v7, 14, v7")
    a("v_and_b32 v5, 3, v0")
    a("s_waitcnt lgkmcnt(0)")
    a("v_lshl_add_u32 v7, v5, 4, v7")
    a("s_lshl_b32 s18, s2, 6")
    a("s_barrier")
    for it in range(4):
        for ih in range(2):
            a("ds_read2st64_b32 %s, v6 offset0:%d offset1:%d" % (vr(XL + 4 * it + 2 * ih, 2), 8 * (2 * ih) + 2 * it, 8 * (2 * ih + 1) + 2 * it))
    for it in range(4):
        a("s_waitcnt lgkmcnt(%d)" % (6 - 2 * it))
        a("buffer_store_dwordx4 %s, v7, s[8:11], s18 offen" % vr(XL + 4 * it, 4))
        if it < 3:
            a("s_add_u32 s18, s18, 0x100000")
    a("s_endpgm")
    a.label("K0_W")
    a("s_sub_u32 s2, s2, 256")
    for n in range(4):
        srd(a, 12 + 4 * n, 36 + 2 * n, WBYTES)
    a("s_and_b32 s28, s2, 31")
    a("s_lshr_b32 s29, s2, 5")
    a("s_lshl_b32 s29, s29, 7")
    a("s_add_u32 s28, s28, s29")
    a("s_lshl_b32 s29, s3, 5")
    a("s_add_u32 s28, s28, s29")
    a("s_mul_i32 s28, s28, 1026")
    a("s_add_u32 s28, s28, 2")
    a("s_add_u32 s29, s28, %d" % (1024 * 1026))
    a("v_lshlrev_b32 v5, 4, v1")
    WL = 8
    for ty in range(2):
        for c in range(2):
            for rw in range(2):
                a("buffer_load_dwordx4 %s, v5, %s, s%d offen" % (vr(WL + ((ty * 2 + c) * 2 + rw) * 4, 4), sr(12 + 4 * (ty * 2 + c), 4), 28 + rw))
    a("v_and_b32 v6, 3, v1")
    a("v_mul_u32_u24 v6, 288, v6")
    a("v_bfe_u32 v7, v1, 2, 2")
    a("v_lshl_add_u32 v6, v7, 3, v6")
    a("v_bfe_u32 v7, v1, 4, 1")
    a("v_lshl_add_u32 v7, v7, 1, v3")
    a("v_lshl_add_u32 v7, v7, 2, s3")
    a("v_mul_u32_u24 v7, 1184, v7")
    a("v_add_u32 v6, v6, v7")
    PQ = 40
    T = 104
    MX = [108, 109]
    first = [True, True]
    for ty in range(2):
        for c in range(2):
            a("s_waitcnt vmcnt(%d)" % (6 - 2 * (ty * 2 + c)))
            b1 = WL + ((ty * 2 + c) * 2) * 4
            b2 = b1 + 4
            for d in range(4):
                a("v_lshlrev_b32 v%d, 16, v%d" % (T, b1 + d))
                a("v_and_b32 v%d, 0xffff0000, v%d" % (T + 1, b1 + d))
                a("v_lshlrev_b32 v%d, 16, v%d" % (T + 2, b2 + d))
                a("v_and_b32 v%d, 0xffff0000, v%d" % (T + 3, b2 + d))
                for u in range(2):
                    base = PQ + (ty * 8 + 2 * d + u) * 4
                    a("v_add_f32 v%d, v%d, v%d" % (base + c, T + u, T + 2 + u))
                    a("v_sub_f32 v%d, v%d, v%d" % (base + 2 + c, T + u, T + 2 + u))
                    if first[u]:
                        a("v_max_f32 v%d, |v%d|, |v%d|" % (MX[u], base + c, base + 2 + c))
                        first[u] = False
                    else:
                        a("v_max3_f32 v%d, |v%d|, |v%d|, v%d" % (MX[u], base + c, base + 2 + c, MX[u]))
    a("v_max_f32 v%d, v%d, v%d" % (MX[0], MX[0], MX[1]))
    wave_allreduce(a, "v_max_f32", [MX[0]], [MX[1]])
    MAXOFF = 32 * 1184
    a("s_lshl_b32 s30, s3, 2")
    a("v_mov_b32 v%d, s30" % T)
    a("ds_write_b32 v%d, v%d offset:%d" % (T, MX[0], MAXOFF))
    a("v_mov_b32 v%d, 0" % (T + 1))
    a("s_waitcnt lgkmcnt(0)")
    a("s_barrier")
    a("ds_read_b128 %s, v%d offset:%d" % (vr(112, 4), T + 1, MAXOFF))
    a("s_waitcnt lgkmcnt(0)")
    a("v_max_f32 v112, v112, v113")
    a("v_max3_f32 v112, v112, v114, v115")
    a("v_lshrrev_b32 v112, 23, v112")
    a("v_add_u32 v112, 2, v112")
    a("v_max_u32 v112, 97, v112" if False else "v_max_u32 v112, 0x61, v112")
    a("v_min_u32 v112, 0xe3, v112")
    a("v_sub_u32 v113, 0xfe, v112")
    a("v_lshlrev_b32 v112, 23, v112")
    a("v_lshlrev_b32 v113, 23, v113")
    for ty in range(2):
        for e8 in range(8):
            base = PQ + (ty * 8 + e8) * 4
            o = WL + 2 * ((ty * 8 + e8) % 16)
            a("v_fma_mixlo_f16 v%d, v%d, v113, 0" % (o, base))
            a("v_fma_mixlo_f16 v%d, v%d, v113, 0" % (o + 1, base + 2))
            a("v_fma_mixhi_f16 v%d, v%d, v113, 0" % (o, base + 1))
            a("v_fma_mixhi_f16 v%d, v%d, v113, 0" % (o + 1, base + 3))
            a("ds_write_b64 v6, %s offset:%d" % (vr(o, 2), ty * 16 * 1184 + e8 * 32))
    a("s_and_b32 s30, s2, 63")
    a("s_lshl_b32 s30, s30, 4")
    a("s_lshr_b32 s31, s2, 6")
    a("s_lshl_b32 s31, s31, 2")
    a("s_add_u32 s30, s30, s31")
    a("s_add_u32 s30, s30, 0x%x" % SIG)
    a("v_mov_b32 v114, 0")
    a("s_mov_b64 exec, 1")
    a("buffer_store_dword v112, v114, s[8:11], s30 offen")
    a("s_mov_b64 exec, -1")
    a("v_lshrrev_b32 v5, 3, v0")
    a("v_add_u32 v5, 31, v5")
    a("v_and_b32 v5, 31, v5")
    a("v_lshrrev_b32 v7, 3, v5")
    a("v_add_u32 v5, v5, v7")
    a("v_lshlrev_b32 v5, 5, v5")
    a("v_bfe_u32 v7, v0, 1, 2")
    a("v_lshl_add_u32 v5, v7, 3, v5")
    a("v_and_b32 v7, 1, v0")
    a("v_mul_u32_u24 v7, %d, v7" % (2 * 1184))
    a("v_add_u32 v5, v5, v7")
    a("v_lshrrev_b32 v7, 2, v0")
    a("v_lshlrev_b32 v7, 15, v7")
    a("v_and_b32 v4, 3, v0")
    a("v_lshl_add_u32 v7, v4, 4, v7")
    a("s_lshl_b32 s30, s2, 6")
    a("s_add_u32 s30, s30, 0x%x" % WBUF)
    a("s_waitcnt lgkmcnt(0)")
    a("s_barrier")
    n = 0
    for ty in range(2):
        for it in range(4):
            off = ((ty * 4 + it) * 4) * 1184
            a("ds_read_b64 %s, v5 offset:%d" % (vr(PQ + 4 * n, 2), off))
            a("ds_read_b64 %s, v5 offset:%d" % (vr(PQ + 4 * n + 2, 2), off + 1184))
            n += 1
            if n == 4 or n == 8:
                for m in range(n - 4, n):
                    a("s_waitcnt lgkmcnt(%d)" % (2 * (n - 1 - m)))
                    a("s_add_u32 s31, s30, 0x%x" % ((m % 4) * 64 * 32768 + (m // 4) * 16384))
                    a("buffer_store_dwordx4 %s, v7, s[8:11], s31 offen" % vr(PQ + 4 * m, 4))
    a.label("K0_END")
    a("s_endpgm")


def gen_c(a):
    kernel_header(a, "cc_kernel")
    SR, SI = 0, 16
    DAr, DAi, DBr, DBi = 32, 48, 64, 80
    OP, OQ = 96, 112
    TW, FR, FI = 128, 144, 160
    PQ = [176, 208]
    VT, VL, VNU, VH = 240, 241, 242, 243
    VX = 244
    VY = 245
    VE = 246
    VF = 247
    VPS = 248
    VAL = 249
    T0 = 250
    LDS_STASH = 0
    LDS_X = 32768
    LDS_E = 49152
    a("s_cmp_ge_u32 s2, 256")
    a.branch("s_cbranch_scc1 CC_END")
    a("s_load_dwordx2 s[4:5], s[0:1], 64")
    a("v_mov_b32 v%d, v0" % VT)
    a("v_and_b32 v%d, 63, v0" % VL)
    a("v_lshrrev_b32 v%d, 6, v0" % T0)
    a("v_and_b32 v%d, 31, v0" % VNU)
    a("v_readfirstlane_b32 s3, v%d" % T0)
    a("v_lshrrev_b32 v%d, 5, v%d" % (VH, VL))
    a("s_and_b32 s12, s3, 1")
    a("s_lshr_b32 s13, s3, 1")
    a("s_lshl_b32 s14, s2, 1")
    a("s_add_u32 s14, s14, s13")
    a("v_lshrrev_b32 v%d, 1, v%d" % (T0, VL))
    a("s_lshl_b32 s15, s12, 7")
    a("v_add_u32 v%d, s15, v%d" % (T0, T0))
    a("v_and_b32 v%d, 1, v%d" % (T0 + 1, VL))
    a("v_lshlrev_b32 v%d, 4, v%d" % (T0 + 1, T0 + 1))
    a("s_lshl_b32 s15, s13, 5")
    a("v_add_u32 v%d, s15, v%d" % (T0 + 1, T0 + 1))
    a("v_lshl_add_u32 v%d, v%d, 6, v%d" % (T0 + 2, T0, T0 + 1))
    a("s_waitcnt lgkmcnt(0)")
    srd(a, 8, 4, WS_BYTES)
    a("v_lshlrev_b32 v%d, 4, v%d" % (T0 + 3, VL))
    a("s_mov_b32 s16, 0x%x" % SIG)
    a("buffer_load_dwordx4 %s, v%d, s[8:11], s16 offen" % (vr(DBi, 4), T0 + 3))
    a("s_lshl_b32 s16, s2, 14")
    a("s_add_u32 s17, s16, 4096")
    for g in range(4):
        a("buffer_load_dwordx4 %s, v%d, s[8:11], s%d offen offset:%d" % (vr(OP + 4 * g, 4), T0 + 2, 16 + g // 2, (g % 2) * 2048))
    a("v_lshlrev_b32 v%d, 6, v%d" % (T0 + 4, VL))
    a("v_add_u32 v%d, s15, v%d" % (T0 + 4, T0 + 4))
    a("s_lshl_b32 s16, s2, 15")
    a("s_add_u32 s16, s16, 0x%x" % WBUF)
    for g in range(4):
        a("s_add_u32 s17, s16, %d" % (g * 4096))
        for ip in range(2):
            a("buffer_load_dwordx4 %s, v%d, s[8:11], s17 offen offset:%d" % (vr(PQ[0] + 8 * g + 4 * ip, 4), T0 + 4, ip * 16))
    a("s_lshl_b32 s17, s12, 12")
    a("s_add_u32 s17, s17, 0x%x" % INVA)
    for g in range(4):
        a("buffer_load_dwordx4 %s, v%d, s[8:11], s17 offen offset:%d" % (vr(OQ + 4 * g, 4), T0 + 3, g * 1024))
    for g in range(4):
        a("s_add_u32 s17, s16, %d" % (16384 + g * 4096))
        for ip in range(2):
            a("buffer_load_dwordx4 %s, v%d, s[8:11], s17 offen offset:%d" % (vr(PQ[1] + 8 * g + 4 * ip, 4), T0 + 4, ip * 16))
    a("s_lshl_b32 s16, s3, 12")
    a("s_add_u32 s16, s16, %d" % LDS_X)
    a("v_add_u32 v%d, s16, v%d" % (VX, T0 + 3))
    a("v_xor_b32 v%d, 0x1000, v%d" % (VY, VX))
    a("s_lshl_b32 s16, s3, 11")
    a("s_add_u32 s16, s16, %d" % LDS_E)
    a("v_add_u32 v%d, s16, v%d" % (VE, T0 + 3))
    a("v_xor_b32 v%d, 0x1000, v%d" % (VF, VE))
    a("s_lshl_b32 s16, s12, 1")
    a("s_add_u32 s16, s16, s13")
    a("s_lshl_b32 s16, s16, 6")
    a("v_add_u32 v%d, s16, v%d" % (VPS, VL))
    a("v_lshlrev_b32 v%d, 12, v%d" % (VPS, VPS))
    a("s_lshl_b32 s16, s12, 7")
    a("v_add_u32 v%d, s16, v%d" % (VAL, VL))
    a("v_lshlrev_b32 v%d, 5, v%d" % (VAL, VAL))
    a("s_lshl_b32 s20, s2, 4")
    a("s_add_u32 s20, s20, 0x%x" % PART)
    a("s_lshl_b32 s21, s2, 12")
    a("s_add_u32 s21, s21, 0x%x" % PART)
    a("s_and_b32 s22, s2, 7")
    a("s_lshl_b32 s22, s22, 13")
    a("s_add_u32 s22, s22, 0x%x" % AVEC)
    a("s_lshl_b32 s23, s2, 5")
    a("s_add_u32 s23, s23, 0x%x" % AVEC)
    TA = DAi
    a("v_cvt_f32_u32 v%d, v%d" % (TA, VNU))
    a("v_cvt_f32_u32 v%d, v%d" % (TA + 1, VH))
    a("v_mul_f32 v%d, v%d, v%d" % (TA + 2, TA, TA + 1))
    a("v_mul_f32 v%d, %s, v%d" % (TA + 3, hexf(4.0 / 1024), TA + 2))
    a("v_mul_f32 v%d, %s, v%d" % (TA + 2, hexf(0.125), TA + 2))
    a("s_mov_b32 s19, %s" % hexf(1.0 / 32))
    for r in range(16):
        u = 4 + 3 * (r & 1)
        angle(a, TA + u, TA, TA + 2, kidx(r) / 32.0)
        a("v_fract_f32 v%d, v%d" % (TA + u, TA + u))
        a("v_cos_f32 v%d, v%d" % (TA + u + 1, TA + u))
        a("v_sin_f32 v%d, v%d" % (TA + u + 2, TA + u))
        a("v_cvt_pk_f16_f32 v%d, v%d, v%d" % (FR + r, TA + u + 1, TA + u + 2))
        a("v_cvt_pk_f16_f32 v%d, -v%d, v%d" % (FI + r, TA + u + 2, TA + u + 1))
    for r in range(16):
        u = 4 + 3 * (r & 1)
        angle(a, TA + u, TA, TA + 3, kidx(r) / 1024.0)
        a("v_cos_f32 v%d, v%d" % (TA + u + 1, TA + u))
        a("v_sin_f32 v%d, v%d" % (TA + u + 2, TA + u))
        a("v_fma_mixlo_f16 v%d, v%d, s19, 0" % (TW + r, TA + u + 1))
        a("v_fma_mixhi_f16 v%d, -v%d, s19, 0" % (TW + r, TA + u + 2))
    a("s_cmp_eq_u32 s12, 0")
    a("s_cselect_b32 s18, %s, %s" % (hexf(-1.0), hexf(1.0)))
    a("v_mul_f32 v%d, %s, v%d" % (TA + 2, hexf(1.0 / 2048), TA))
    a("v_fmamk_f32 v%d, v%d, %s, v%d" % (TA + 2, TA + 1, hexf(1.0 / 16), TA + 2))
    a("v_mul_f32 v%d, s18, v%d" % (TA + 2, TA + 2))
    a("v_mov_b32 v%d, s18" % (TA + 3))
    for r in range(16):
        u = 4 + 3 * (r & 1)
        angle(a, TA + u, TA + 3, TA + 2, kidx(r) / 64.0)
        a("v_cos_f32 v%d, v%d" % (TA + u + 1, TA + u))
        a("v_sin_f32 v%d, v%d" % (TA + u + 2, TA + u))
        a("v_cvt_pk_f16_f32 v%d, v%d, v%d" % (DAr + r, TA + u + 1, TA + u + 2))
    a("s_waitcnt vmcnt(24)")
    a("v_max_f32 v%d, v%d, v%d" % (TA, DBi, DBi + 1))
    a("v_max3_f32 v%d, v%d, v%d, v%d" % (TA, TA, DBi + 2, DBi + 3))
    wave_allreduce(a, "v_max_f32", [TA], [TA + 1])
    a("v_sub_u32 v%d, 0x7f000000, v%d" % (TA + 1, TA))
    for g in range(4):
        a("v_mul_f32 v%d, v%d, v%d" % (DBi + g, DBi + g, TA + 1))
    for g in range(4):
        a("v_cvt_pk_f16_f32 v%d, v%d, v%d" % (DBi + g, DBi + g, DBi + g))
    a("v_mul_f32 v%d, v%d, v%d" % (TA + 2, TA + 1, TA + 1))
    a("v_mul_f32 v%d, %s, v%d" % (TA + 2, hexf(EPS), TA + 2))
    a("v_mul_f32 v%d, %s, v%d" % (TA + 3, hexf(1.0 / 16), TA + 1))
    a("v_mul_f32 v%d, %s, v%d" % (TA + 4, hexf(16.0), TA))
    a("v_readfirstlane_b32 s24, v%d" % (TA + 2))
    a("v_readfirstlane_b32 s25, v%d" % (TA + 3))
    a("s_or_b32 s16, s2, s3")
    a("s_cmp_lg_u32 s16, 0")
    a.branch("s_cbranch_scc1 CC_NOC")
    a("v_mov_b32 v%d, 0" % (TA + 5))
    a("s_mov_b32 s16, 0x%x" % CSC)
    a("s_mov_b64 exec, 1")
    a("buffer_store_dword v%d, v%d, s[8:11], s16 offen" % (TA + 4, TA + 5))
    a("s_mov_b64 exec, -1")
    a("s_waitcnt vmcnt(0)")
    a.label("CC_NOC")
    for r in range(16):
        a("v_pk_mul_f16 v%d, v%d, v%d" % (DAr + r, DAr + r, DBi + r // 4))
    a("s_waitcnt vmcnt(0)")
    for ty in range(2):
        for r in range(16):
            P, Q = PQ[ty] + 2 * r, PQ[ty] + 2 * r + 1
            a("v_pk_mul_f16 v%d, v%d, v%d" % (P, P, DBi + r // 4))
            t = DBr + (r % 4)
            o = cmul_ops(t, Q, DAr + r)
            a(o[0])
            a(o[1].replace("v_pk_fma_f16 v%d," % t, "v_pk_fma_f16 v%d," % Q, 1))
    for r in range(16):
        a("v_mul_f32 v%d, s25, v%d" % (OQ + r, OQ + r))
    a("s_lshl_b32 s16, s3, 13")
    a("v_add_u32 v%d, s16, v%d" % (T0 + 5, T0 + 3))
    for g in range(4):
        a("ds_write_b128 v%d, %s offset:%d" % (T0 + 5, vr(OP + 4 * g, 4), g * 1024))
        a("ds_write_b128 v%d, %s offset:%d" % (T0 + 5, vr(OQ + 4 * g, 4), 4096 + g * 1024))
    for r in range(16):
        a("v_fma_mix_f32 v%d, v%d, v%d, 0 op_sel_hi:[1,0,0]" % (SR + r, OP + r, OQ + r))
        a("v_fma_mix_f32 v%d, -v%d, v%d, 0 op_sel:[1,0,0] op_sel_hi:[1,0,0]" % (SI + r, OP + r, OQ + r))
    a("s_cmp_lg_u32 s14, 387")
    a.branch("s_cbranch_scc1 CC_NONYQ_I")
    for r in range(16):
        a("v_mov_b32 v%d, 0" % (SI + r))
    a.label("CC_NONYQ_I")

    def mf(kind, D, opreg, F, t, cinit):
        c = cinit if t == 0 else vr(D, 16)
        if kind == "A":
            return "v_mfma_f32_32x32x16_f16 %s, %s, %s, %s" % (vr(D, 16), vr(opreg + 4 * t, 4), vr(F + 4 * t, 4), c)
        return "v_mfma_f32_32x32x16_f16 %s, %s, %s, %s" % (vr(D, 16), vr(F + 4 * t, 4), vr(opreg + 4 * t, 4), c)

    def stage(kind, Dr, Di, opreg, valu, per, cr="0", ci="0"):
        mfs = []
        for t in range(4):
            rd = per * (t + 1) + 2
            mfs.append((rd, mf(kind, Dr, opreg, FR, t, cr)))
            mfs.append((rd + per // 2, mf(kind, Di, opreg, FI, t, ci)))
        interleave(a, valu, mfs)

    def twiddle_ops(Dr, Di):
        v = []
        for t in range(4):
            for p in range(4):
                r = 4 * t + p
                v.append("v_cvt_pk_f16_f32 v%d, v%d, v%d" % (OQ + r, Dr + r, Di + r))
            ops = [cmul_ops(OP + 4 * t + p, OQ + 4 * t + p, TW + 4 * t + p) for p in range(4)]
            v += [o[0] for o in ops] + [o[1] for o in ops]
        return v

    for layer in range(4):
        ty = layer % 2
        a.comment("==== layer %d ====" % layer)
        if layer == 0:
            stage("A", DAr, DAi, OP, [], 0)
        else:
            v = []
            for t in range(4):
                for p in range(4):
                    r = 4 * t + p
                    v.append("v_fma_mixlo_f16 v%d, v%d, |v%d|, 0" % (OP + r, SR + r, DBr + r))
                for p in range(4):
                    r = 4 * t + p
                    v.append("v_fma_mixhi_f16 v%d, v%d, -|v%d|, 0" % (OP + r, SI + r, DBr + r))
            stage("A", DAr, DAi, OP, v, 8)
        stage("B", DBr, DBi, OP, twiddle_ops(DAr, DAi), 12)
        for g in range(4):
            for p in range(4):
                r = 4 * g + p
                a("v_cvt_pk_f16_f32 v%d, v%d, v%d" % (OP + r, DBr + r, DBi + r))
            a("ds_write_b128 v%d, %s offset:%d" % (VX, vr(OP + 4 * g, 4), g * 1024))
        own1 = ["v_pk_mul_f16 v%d, v%d, v%d op_sel:[0,0] op_sel_hi:[1,0] neg_hi:[1,0]" % (DBr + r, OP + r, PQ[ty] + 2 * r) for r in range(16)]
        own2 = ["v_pk_fma_f16 v%d, v%d, v%d, v%d op_sel:[1,1,0] op_sel_hi:[0,1,1] neg_lo:[1,0,0] neg_hi:[1,0,0]" % (DBr + r, OP + r, PQ[ty] + 2 * r, DBr + r) for r in range(16)]
        for x in own1[:8]:
            a(x)
        a("s_waitcnt lgkmcnt(0)")
        a("s_barrier")
        for g in range(4):
            a("ds_read_b128 %s, v%d offset:%d" % (vr(OQ + 4 * g, 4), VY, g * 1024))
        for x in own1[8:] + own2:
            a(x)
        v = []
        for t in range(4):
            v.append("s_waitcnt lgkmcnt(%d)" % (3 - t))
            for p in range(4):
                r = 4 * t + p
                v.append("v_pk_fma_f16 v%d, v%d, v%d, v%d op_sel:[0,0,0] op_sel_hi:[1,0,1] neg_hi:[1,0,0]" % (DBr + r, OQ + r, PQ[ty] + 2 * r + 1, DBr + r))
            for p in range(4):
                r = 4 * t + p
                v.append("v_pk_fma_f16 v%d, v%d, v%d, v%d op_sel:[1,1,0] op_sel_hi:[0,1,1] neg_lo:[1,0,0] neg_hi:[1,0,0]" % (DBr + r, OQ + r, PQ[ty] + 2 * r + 1, DBr + r))
        stage("A", DAr, DAi, DBr, v, 9)
        stage("B", SR, SI, OP, twiddle_ops(DAr, DAi), 12, cr=vr(SR, 16), ci=vr(SI, 16))
        a("s_cmp_lg_u32 s14, 387")
        a.branch("s_cbranch_scc1 CC_NONYQ_%d" % layer)
        for r in range(16):
            a("v_mov_b32 v%d, 0" % (SI + r))
        a.label("CC_NONYQ_%d" % layer)
        if layer == 3:
            break
        neg = (layer % 2 == 0)
        for r in range(16):
            a("v_mul_f32 v%d, v%d, v%d" % (DAr + r, SR + r, SR + r))
        for r in range(16):
            a("v_fmac_f32 v%d, v%d, v%d" % (DAr + r, SI + r, SI + r))
        a("s_cmp_lg_u32 s14, 387")
        a.branch("s_cbranch_scc1 CC_NONYQE_%d" % layer)
        for r in range(16):
            a("v_mul_f32 v%d, 0.5, v%d" % (DAr + r, DAr + r))
        a.label("CC_NONYQE_%d" % layer)
        a("s_cmp_eq_u32 s13, 0")
        a.branch("s_cbranch_scc1 CC_E0_%d" % layer)
        a("ds_write_b128 v%d, %s" % (VE, vr(DAr, 4)))
        a("ds_write_b128 v%d, %s offset:1024" % (VE, vr(DAr + 4, 4)))
        for q in range(8):
            a("v_mov_b32 v%d, v%d" % (DAi + q, DAr + 8 + q))
        a.branch("s_branch CC_E1_%d" % layer)
        a.label("CC_E0_%d" % layer)
        a("ds_write_b128 v%d, %s" % (VE, vr(DAr + 8, 4)))
        a("ds_write_b128 v%d, %s offset:1024" % (VE, vr(DAr + 12, 4)))
        for q in range(8):
            a("v_mov_b32 v%d, v%d" % (DAi + q, DAr + q))
        a.label("CC_E1_%d" % layer)
        a("s_waitcnt lgkmcnt(0)")
        a("s_barrier")
        a("ds_read_b128 %s, v%d" % (vr(DAi + 8, 4), VF))
        a("ds_read_b128 %s, v%d offset:1024" % (vr(DAi + 12, 4), VF))
        a("s_waitcnt lgkmcnt(0)")
        for q in range(8):
            a("v_add_f32 v%d, v%d, v%d" % (DAi + q, DAi + q, DAi + 8 + q))
        for q in range(4):
            a("v_cvt_pk_bf16_f32 v%d, v%d, v%d" % (DAr + q, DAi + 2 * q, DAi + 2 * q + 1))
        for q in range(4):
            if neg:
                a("v_or_b32 v%d, 0x80008000, v%d" % (DAr + q, DAr + q))
            else:
                a("v_and_b32 v%d, 0x7fff7fff, v%d" % (DAr + q, DAr + q))
        a("buffer_store_dwordx4 %s, v%d, s[8:11], s20 offen sc1" % (vr(DAr, 4), VPS))
        a("s_cmp_lg_u32 s3, 0")
        a.branch("s_cbranch_scc1 CC_HOP2_%d" % layer)
        SEL = DBi
        a("v_bfe_u32 v%d, v%d, 1, 2" % (T0, VL))
        a("v_and_b32 v%d, 1, v%d" % (T0 + 1, VL))
        a("v_lshlrev_b32 v%d, 4, v%d" % (T0 + 1, T0 + 1))
        a("v_mov_b32 v%d, 0x3f80" % (T0 + 2))
        a("v_lshlrev_b32 v%d, v%d, v%d" % (T0 + 2, T0 + 1, T0 + 2))
        for d in range(4):
            a("v_cmp_eq_u32 vcc, %d, v%d" % (d, T0))
            a("v_cndmask_b32 v%d, 0, v%d, vcc" % (SEL + d, T0 + 2))
        a("v_lshlrev_b32 v%d, 4, v%d" % (T0 + 3, VL))
        a("s_mov_b32 s27, 0")
        if D1:
            a("s_sleep %d" % D1)
        a.label("CC_POLL1_%d" % layer)
        for q in range(4):
            a("buffer_load_dwordx4 %s, v%d, s[8:11], s21 offen offset:%d sc1" % (vr(OP + 4 * q, 4), T0 + 3, q * 1024))
        a("s_waitcnt vmcnt(0)")
        bop = "0x80" if neg else "0xfe"
        a("v_bitop3_b32 v%d, v%d, v%d, v%d bitop3:%s" % (T0, OP, OP + 1, OP + 2, bop))
        a("v_bitop3_b32 v%d, v%d, v%d, v%d bitop3:%s" % (T0 + 1, OP + 3, OP + 4, OP + 5, bop))
        for q in range(6, 16, 4):
            a("v_bitop3_b32 v%d, v%d, v%d, v%d bitop3:%s" % (T0, T0, OP + q, OP + q + 1, bop))
            if q + 3 < 16:
                a("v_bitop3_b32 v%d, v%d, v%d, v%d bitop3:%s" % (T0 + 1, T0 + 1, OP + q + 2, OP + q + 3, bop))
        a(("v_and_b32" if neg else "v_or_b32") + " v%d, v%d, v%d" % (T0, T0, T0 + 1))
        a("v_and_b32 v%d, 0x80008000, v%d" % (T0, T0))
        a("v_cmp_ne_u32 vcc, %s, v%d" % ("0x80008000" if neg else "0", T0))
        a("s_add_u32 s27, s27, 1")
        a("s_cmp_gt_u32 s27, %d" % SPIN_MAX)
        a.branch("s_cbranch_scc1 CC_POLL1X_%d" % layer)
        a.branch("s_cbranch_vccnz CC_POLL1_%d" % layer)
        a.label("CC_POLL1X_%d" % layer)
        RD = DBr
        for q in range(4):
            a("v_mfma_f32_16x16x32_bf16 %s, %s, %s, %s" % (vr(RD, 4), vr(SEL, 4), vr(OP + 4 * q, 4), "0" if q == 0 else vr(RD, 4)))
        for ctl in ("quad_perm:[1,0,3,2]", "quad_perm:[2,3,0,1]", "row_half_mirror", "row_mirror"):
            for r in range(4):
                a("v_add_f32_dpp v%d, v%d, v%d %s row_mask:0xf bank_mask:0xf" % (RD + r, RD + r, RD + r, ctl))
        a("v_mov_b32 v%d, %s" % (T0, hexf(1.0 / 2048)))
        for r in range(4):
            a("v_fma_f32 v%d, |v%d|, v%d, s24" % (RD + r, RD + r, T0))
        for r in range(4):
            a("v_rsq_f32 v%d, v%d" % (RD + r, RD + r))
        for r in range(4):
            a("v_mul_f32 v%d, 0.5, v%d" % (RD + r, RD + r))
        for r in range(4):
            if neg:
                a("v_or_b32 v%d, 0x80000000, v%d" % (RD + r, RD + r))
            else:
                a("v_and_b32 v%d, 0x7fffffff, v%d" % (RD + r, RD + r))
        a("v_and_b32 v%d, 7, v%d" % (T0, VL))
        a("v_lshlrev_b32 v%d, 13, v%d" % (T0, T0))
        a("v_add_u32 v%d, v%d, v%d" % (T0, T0, T0 + 1) if False else "v_and_b32 v%d, 16, v%d" % (T0 + 1, VL))
        a("v_add_u32 v%d, v%d, v%d" % (T0, T0, T0 + 1))
        a("s_mov_b64 exec, 0x00ff00ff")
        a("buffer_store_dwordx4 %s, v%d, s[8:11], s23 offen sc1" % (vr(RD, 4), T0))
        a("s_mov_b64 exec, -1")
        a.branch("s_branch CC_HOP2B_%d" % layer)
        a.label("CC_HOP2_%d" % layer)
        if D1:
            a("s_sleep %d" % D1)
            a("s_sleep %d" % 20)
        a.label("CC_HOP2B_%d" % layer)
        a("s_mov_b32 s27, 0")
        if D2:
            a("s_sleep %d" % D2)
        a.label("CC_POLL2_%d" % layer)
        for g in range(4):
            a("buffer_load_dwordx4 %s, v%d, s[8:11], s22 offen offset:%d sc1" % (vr(DBr + 4 * g, 4), VAL, (g // 2) * 2048 + (g % 2) * 16))
        a("s_waitcnt vmcnt(0)")
        B = DBr
        a("v_bitop3_b32 v%d, v%d, v%d, v%d bitop3:%s" % (T0, B, B + 1, B + 2, bop))
        a("v_bitop3_b32 v%d, v%d, v%d, v%d bitop3:%s" % (T0 + 1, B + 3, B + 4, B + 5, bop))
        for q in range(6, 16, 4):
            a("v_bitop3_b32 v%d, v%d, v%d, v%d bitop3:%s" % (T0, T0, B + q, B + q + 1, bop))
            if q + 3 < 16:
                a("v_bitop3_b32 v%d, v%d, v%d, v%d bitop3:%s" % (T0 + 1, T0 + 1, B + q + 2, B + q + 3, bop))
        a(("v_and_b32" if neg else "v_or_b32") + " v%d, v%d, v%d" % (T0, T0, T0 + 1))
        if neg:
            a("v_cmp_le_i32 vcc, 0, v%d" % T0)
        else:
            a("v_cmp_gt_i32 vcc, 0, v%d" % T0)
        a("s_add_u32 s27, s27, 1")
        a("s_cmp_gt_u32 s27, %d" % SPIN_MAX)
        a.branch("s_cbranch_scc1 CC_POLL2X_%d" % layer)
        a.branch("s_cbranch_vccnz CC_POLL2_%d" % layer)
        a.label("CC_POLL2X_%d" % layer)
    a("v_lshlrev_b32 v%d, 4, v%d" % (T0 + 3, VL))
    a("s_lshl_b32 s16, s3, 13")
    a("v_add_u32 v%d, s16, v%d" % (T0 + 5, T0 + 3))
    for g in range(4):
        a("ds_read_b128 %s, v%d offset:%d" % (vr(OP + 4 * g, 4), T0 + 5, g * 1024))
        a("ds_read_b128 %s, v%d offset:%d" % (vr(OQ + 4 * g, 4), T0 + 5, 4096 + g * 1024))
    a("v_lshrrev_b32 v%d, 1, v%d" % (T0, VL))
    a("s_lshl_b32 s15, s12, 7")
    a("v_add_u32 v%d, s15, v%d" % (T0, T0))
    a("v_and_b32 v%d, 1, v%d" % (T0 + 1, VL))
    a("v_lshlrev_b32 v%d, 4, v%d" % (T0 + 1, T0 + 1))
    a("s_lshl_b32 s15, s13, 5")
    a("v_add_u32 v%d, s15, v%d" % (T0 + 1, T0 + 1))
    a("v_lshl_add_u32 v%d, v%d, 14, v%d" % (T0 + 2, T0, T0 + 1))
    a("s_lshl_b32 s16, s2, 6")
    a("s_add_u32 s16, s16, 0x%x" % DBUF)
    a("s_mov_b32 s17, 0x3c003c00")
    a("s_cmp_eq_u32 s14, 387")
    a("s_cselect_b32 s17, 0x38003800, s17")
    a("s_waitcnt lgkmcnt(0)")
    for g in range(4):
        for p in range(4):
            r = 4 * g + p
            a("v_fma_mixlo_f16 v%d, v%d, -v%d, v%d op_sel_hi:[1,0,0]" % (DAr + r, OP + r, OQ + r, SR + r))
        for p in range(4):
            r = 4 * g + p
            a("v_fma_mixhi_f16 v%d, v%d, -v%d, -v%d op_sel:[1,0,0] op_sel_hi:[1,0,0]" % (DAr + r, OP + r, OQ + r, SI + r))
        for p in range(4):
            r = 4 * g + p
            a("v_pk_mul_f16 v%d, v%d, s17" % (DAr + r, DAr + r))
        a("buffer_store_dwordx4 %s, v%d, s[8:11], s16 offen" % (vr(DAr + 4 * g, 4), T0 + 2))
        if g < 3:
            a("s_add_u32 s16, s16, 0x80000")
    a.label("CC_END")
    a("s_endpgm")


def gen_k5(a):
    kernel_header(a, "k5_kernel")
    MU = 1.0 / 16
    a("s_cmp_ge_u32 s2, 256")
    a.branch("s_cbranch_scc1 K5_END")
    a("s_load_dwordx2 s[4:5], s[0:1], 64")
    a("s_load_dwordx2 s[6:7], s[0:1], 0")
    a("s_load_dwordx2 s[28:29], s[0:1], 48")
    a("v_and_b32 v1, 63, v0")
    a("v_lshrrev_b32 v5, 6, v0")
    a("v_and_b32 v2, 31, v0")
    a("v_readfirstlane_b32 s3, v5")
    a("v_lshrrev_b32 v3, 5, v1")
    a("v_lshlrev_b32 v6, 4, v0")
    a("s_waitcnt lgkmcnt(0)")
    srd(a, 8, 4, WS_BYTES)
    srd(a, 12, 6, XBYTES)
    srd(a, 24, 28, XBYTES)
    a("s_add_u32 s30, s4, 0x%x" % CSC)
    a("s_addc_u32 s31, s5, 0")
    a("s_load_dword s32, s[30:31], 0")
    DL = 8
    a("s_lshl_b32 s18, s2, 14")
    a("s_add_u32 s18, s18, 0x%x" % DBUF)
    for it in range(4):
        a("s_add_u32 s19, s18, %d" % (it * 4096))
        a("buffer_load_dwordx4 %s, v6, s[8:11], s19 offen" % vr(DL + 4 * it, 4))
    a("s_lshr_b32 s16, s2, 4")
    a("s_and_b32 s16, s16, 7")
    a("s_lshl_b32 s16, s16, 8")
    a("s_lshl_b32 s17, s3, 6")
    a("s_add_u32 s16, s16, s17")
    a("s_and_b32 s17, s2, 15")
    a("s_lshl_b32 s17, s17, 2")
    a("s_add_u32 s16, s16, s17")
    a("s_lshr_b32 s17, s2, 7")
    a("s_add_u32 s16, s16, s17")
    a("s_lshl_b32 s16, s16, 11")
    a("s_add_u32 s17, s16, 4096")
    a("v_lshlrev_b32 v5, 6, v2")
    a("v_lshl_add_u32 v5, v3, 5, v5")
    XL = 24
    for e in range(2):
        for u in range(2):
            a("buffer_load_dwordx4 %s, v5, s[12:15], s%d offen offset:%d" % (vr(XL + 8 * e + 4 * u, 4), 16 + e, 16 * u))
    a("v_and_b32 v6, 1, v0")
    a("v_mul_u32_u24 v6, %d, v6" % (8192 + 64))
    a("v_lshrrev_b32 v7, 1, v0")
    a("v_lshl_add_u32 v6, v7, 2, v6")
    GAr, GAi, TW, GB = 40, 48, 56, 72
    T = 224
    a("v_bfe_u32 v%d, v2, 2, 1" % T)
    a("v_lshlrev_b32 v%d, 4, v%d" % (T, T))
    a("v_lshrrev_b32 v%d, 3, v2" % (T + 1))
    a("v_lshl_add_u32 v%d, v%d, 2, v%d" % (T, T + 1, T))
    a("v_and_b32 v%d, 3, v2" % (T + 1))
    a("v_add_u32 v%d, v%d, v%d" % (T, T, T + 1))
    a("v_cvt_f32_u32 v%d, v%d" % (T, T))
    a("v_cvt_f32_u32 v%d, v3" % (T + 1))
    a("v_cvt_f32_u32 v%d, v2" % (T + 2))
    a("v_mul_f32 v%d, v%d, v%d" % (T + 3, T, T + 1))
    a("v_mul_f32 v%d, %s, v%d" % (T + 4, hexf(0.25), T + 3))
    a("s_mov_b32 s19, %s" % hexf(MU))
    for q in range(8):
        u = 8 + 3 * (q & 1)
        angle(a, T + u, T, T + 4, q / 32.0)
        a("v_fract_f32 v%d, v%d" % (T + u, T + u))
        a("v_cos_f32 v%d, v%d" % (T + u + 1, T + u))
        a("v_sin_f32 v%d, v%d" % (T + u + 2, T + u))
        a("v_fma_mixlo_f16 v%d, v%d, s19, 0" % (GAr + q, T + u + 1))
        a("v_fma_mixlo_f16 v%d, v%d, s19, 0" % (GAi + q, T + u + 2))
        a("v_fma_mixhi_f16 v%d, -v%d, s19, 0" % (GAr + q, T + u + 2))
        a("v_fma_mixhi_f16 v%d, v%d, s19, 0" % (GAi + q, T + u + 1))
    a("v_mul_f32 v%d, %s, v%d" % (T + 4, hexf(4.0 / 1024), T + 3))
    a("v_mul_f32 v%d, %s, v%d" % (T + 5, hexf(32.0 / 1024), T))
    a("v_cmp_eq_u32 vcc, 0, v3")
    a("v_cndmask_b32 v%d, v%d, v%d, vcc" % (T + 5, T + 4, T + 5))
    for r in range(16):
        u = 8 + 3 * (r & 1)
        if r == 0:
            a("v_mov_b32 v%d, v%d" % (T + u, T + 5))
        else:
            angle(a, T + u, T, T + 4, kidx(r) / 1024.0)
        a("v_cos_f32 v%d, v%d" % (T + u + 1, T + u))
        a("v_sin_f32 v%d, v%d" % (T + u + 2, T + u))
        a("v_cvt_pk_f16_f32 v%d, v%d, v%d" % (TW + r, T + u + 1, T + u + 2))
    a("v_mul_f32 v%d, v%d, v%d" % (T + 4, T + 2, T + 1))
    a("v_mul_f32 v%d, %s, v%d" % (T + 4, hexf(0.125), T + 4))
    for r in range(16):
        u = 8 + 3 * (r & 1)
        angle(a, T + u, T + 2, T + 4, kidx(r) / 32.0)
        a("v_fract_f32 v%d, v%d" % (T + u, T + u))
        a("v_cos_f32 v%d, v%d" % (T + u + 1, T + u))
        a("v_sin_f32 v%d, v%d" % (T + u + 2, T + u))
        a("v_cvt_pk_f16_f32 v%d, v%d, -v%d" % (GB + r, T + u + 1, T + u + 2))
    for it in range(4):
        a("s_waitcnt vmcnt(%d)" % (7 - it))
        for ih in range(2):
            a("ds_write2st64_b32 v6, v%d, v%d offset0:%d offset1:%d" % (DL + 4 * it + 2 * ih, DL + 4 * it + 2 * ih + 1, 8 * (2 * ih) + 2 * it, 8 * (2 * ih + 1) + 2 * it))
    a("s_lshl_b32 s18, s3, 11")
    a("v_lshlrev_b32 v7, 4, v1")
    a("v_add_u32 v7, s18, v7")
    a("s_waitcnt lgkmcnt(0)")
    a("s_barrier")
    for e in range(2):
        for t in range(2):
            a("ds_read_b128 %s, v7 offset:%d" % (vr(DL + 8 * e + 4 * t, 4), e * (8192 + 64) + t * 1024))
    a("v_mov_b32 v%d, s32" % (T + 6))
    a("v_mul_f32 v%d, %s, v%d" % (T + 6, hexf(2.0 / (1024 * MU)), T + 6))
    TR = [88, 152]
    TI = [104, 168]
    OP = [120, 184]
    XF = [136, 200]
    for e in range(2):
        a("s_waitcnt lgkmcnt(%d)" % (2 - 2 * e))
        for t in range(2):
            a("v_mfma_f32_32x32x16_f16 %s, %s, %s, %s" % (vr(TR[e], 16), vr(DL + 8 * e + 4 * t, 4), vr(GAr + 4 * t, 4), "0" if t == 0 else vr(TR[e], 16)))
            a("v_mfma_f32_32x32x16_f16 %s, %s, %s, %s" % (vr(TI[e], 16), vr(DL + 8 * e + 4 * t, 4), vr(GAi + 4 * t, 4), "0" if t == 0 else vr(TI[e], 16)))
    a("s_waitcnt vmcnt(0)")
    for e in range(2):
        for q in range(8):
            a("v_lshlrev_b32 v%d, 16, v%d" % (XF[e] + 2 * q, XL + 8 * e + q))
            a("v_and_b32 v%d, 0xffff0000, v%d" % (XF[e] + 2 * q + 1, XL + 8 * e + q))
    for e in range(2):
        valu = []
        for t in range(4):
            for p in range(4):
                r = 4 * t + p
                valu.append("v_cvt_pk_f16_f32 v%d, v%d, v%d" % (TI[e] + r, TR[e] + r, TI[e] + r))
            ops = [cmul_ops(OP[e] + 4 * t + p, TI[e] + 4 * t + p, TW + 4 * t + p) for p in range(4)]
            valu += [o[0] for o in ops] + [o[1] for o in ops]
        for v in valu:
            a(v)
        for t in range(4):
            a("v_mfma_f32_32x32x16_f16 %s, %s, %s, %s" % (vr(TR[e], 16), vr(OP[e] + 4 * t, 4), vr(GB + 4 * t, 4), "0" if t == 0 else vr(TR[e], 16)))
    for e in range(2):
        for r in range(16):
            a("v_fmac_f32 v%d, v%d, v%d" % (XF[e] + r, TR[e] + r, T + 6))
        for q in range(8):
            a("v_cvt_pk_bf16_f32 v%d, v%d, v%d" % (OP[e] + q, XF[e] + 2 * q, XF[e] + 2 * q + 1))
        for u in range(2):
            a("buffer_store_dwordx4 %s, v5, s[24:27], s%d offen offset:%d" % (vr(OP[e] + 4 * u, 4), 16 + e, 16 * u))
    a.label("K5_END")
    a("s_endpgm")


def main(out):
    a = Asm()
    a.raw("; @launch kernel=k0_kernel grid=(512,1,1) block=(256,1,1) lds=38016")
    a.raw("; @launch kernel=cc_kernel grid=(256,1,1) block=(256,1,1) lds=57344")
    a.raw("; @launch kernel=k5_kernel grid=(256,1,1) block=(256,1,1) lds=16512")
    a.raw('.amdgcn_target "amdgcn-amd-amdhsa--gfx950"')
    a.raw(".text")
    gen_k0(a)
    gen_c(a)
    gen_k5(a)
    a.raw('.section .rodata,"a"')
    for name, nv in (("k0_kernel", 240), ("cc_kernel", 256), ("k5_kernel", 240)):
        a.raw(".p2align 6")
        a.raw(descriptor(name, nv, 64))
    open(out, "w").write(a.text())
    print("instructions:", a.count, "nop states:", a.nops)


if __name__ == "__main__":
    main(sys.argv[1] if len(sys.argv) > 1 else "interleave_layers__spectral_gfnet__spectral_gfnet__prompt.s")
```

```python
import sys
from asmlib import Asm, vr, sr, hexf, f2u

KNAME = "interleave_layers__spectral_gfnet__spectral_gfnet__prompt_kernel"
MB = 1 << 20
NBUF = 0
WBUF = 4 * MB
DBUF = 12 * MB
PART = 16 * MB
AVEC = 19 * MB
FN = AVEC + 3 * 65536
FW = FN + 65536
FB = FW + 16384
WS_BYTES = 268435456
XBYTES = 4194304
WBYTES = 2048 * 513 * 2
EPS = 1e-5
SPIN_MAX = 20000

P = dict(DN=10, DPN=3, DW=0, D1=14, D2=12, D5=12)
STAMPS = False
STAMP_BASE = 20 * MB

L_FR = 0
L_FI = 4096
L_CS = 8192
L_TW0 = 12288
L_TW = 16384
L_QT = 20480
L_MISC = 24576
BS = 1216
WST = 16 * BS
L_WSB = L_MISC + 256
L_WSA = L_WSB + WST
L_ROW = L_WSA + WST
CS = 3 * 4096 + 64
L_PQ = [L_ROW + 16512, L_WSA]
assert L_WSA + 2 * CS <= L_ROW + 16512
L_X = L_PQ[0] + 2 * CS
L_E = L_X + 16384
L_STASH = L_E + 8192
LDS_BYTES = L_STASH + 32768
assert LDS_BYTES <= 163840, LDS_BYTES
L_SIGT = L_TW0
LF_E = L_MISC + 0
LF_W = L_MISC + 4
LF_B = L_MISC + 8
LF_PQ = L_MISC + 12
LF_H1 = L_MISC + 16
LF_PS = L_MISC + 20
LF_BS = L_MISC + 24
LF_DS = L_MISC + 28
LF_X = L_MISC + 32
LF_EN = L_MISC + 48
L_INV = L_MISC + 64
L_EXP = L_MISC + 96

VT, VL, VNU, VH = 240, 241, 242, 243
V16 = 244

_nst = [0]


def stamp(a, name=""):
    if not STAMPS:
        return
    n = _nst[0]
    _nst[0] += 1
    a("s_memrealtime s[48:49]")
    a("s_waitcnt lgkmcnt(0)")
    a("s_mov_b32 s%d, s48 ; stamp %d %s" % (50 + n, n, name))


def stamp_val(a, sreg, name=""):
    if not STAMPS:
        return
    n = _nst[0]
    _nst[0] += 1
    a("s_mov_b32 s%d, %s ; stampval %d %s" % (50 + n, sreg, n, name))


def stamp_dump(a, n, vtmp):
    if not STAMPS:
        return
    for i in range(n):
        a("v_writelane_b32 v%d, s%d, %d" % (vtmp, 50 + i, i))
    a("v_lshlrev_b32 v%d, 2, v%d" % (vtmp + 1, VL))
    a("s_lshl_b32 s48, s2, 3")
    a("s_add_u32 s48, s48, s3")
    a("s_lshl_b32 s48, s48, 8")
    a("s_add_u32 s48, s48, 0x%x" % STAMP_BASE)
    a("buffer_store_dword v%d, v%d, s[8:11], s48 offen" % (vtmp, vtmp + 1))


def srd(a, sbase, sptr, nbytes):
    a("s_mov_b32 s%d, s%d" % (sbase, sptr))
    a("s_and_b32 s%d, s%d, 0xffff" % (sbase + 1, sptr + 1))
    a("s_mov_b32 s%d, 0x%x" % (sbase + 2, nbytes))
    a("s_mov_b32 s%d, 0x00020000" % (sbase + 3))


def cmul_ops(dst, x, w):
    return ["v_pk_mul_f16 v%d, v%d, v%d op_sel:[0,0] op_sel_hi:[1,0]" % (dst, x, w),
            "v_pk_fma_f16 v%d, v%d, v%d, v%d op_sel:[1,1,0] op_sel_hi:[0,1,1] neg_lo:[1,0,0]" % (dst, x, w, dst)]


def wave_allreduce_ops(op, r, t):
    o = []
    for ctl in ("quad_perm:[1,0,3,2]", "quad_perm:[2,3,0,1]", "row_half_mirror", "row_mirror"):
        o.append("%s_dpp v%d, v%d, v%d %s row_mask:0xf bank_mask:0xf" % (op, r, r, r, ctl))
    for sw in ("v_permlane16_swap_b32", "v_permlane32_swap_b32"):
        o.append("v_mov_b32 v%d, v%d" % (t, r))
        o.append("%s v%d, v%d" % (sw, r, t))
        o.append("%s v%d, v%d, v%d" % (op, r, r, t))
    return o


def zipper(a, main, filler, ratio=1):
    fi = 0
    for m in main:
        a(m)
        for _ in range(ratio):
            if fi < len(filler):
                a(filler[fi])
                fi += 1
    return filler[fi:]


def interleave(a, valu, mfmas):
    mi = 0
    for i, v in enumerate(valu):
        while mi < len(mfmas) and mfmas[mi][0] <= i:
            a(mfmas[mi][1])
            mi += 1
        a(v)
    while mi < len(mfmas):
        a(mfmas[mi][1])
        mi += 1


def and_or_tree(a, regs, t0, t1, use_and):
    bop = "0x80" if use_and else "0xfe"
    op2 = "v_and_b32" if use_and else "v_or_b32"
    regs = list(regs)
    if len(regs) == 4:
        a("v_bitop3_b32 v%d, v%d, v%d, v%d bitop3:%s" % (t0, regs[0], regs[1], regs[2], bop))
        a("%s v%d, v%d, v%d" % (op2, t0, t0, regs[3]))
        return
    a("v_bitop3_b32 v%d, v%d, v%d, v%d bitop3:%s" % (t0, regs[0], regs[1], regs[2], bop))
    a("v_bitop3_b32 v%d, v%d, v%d, v%d bitop3:%s" % (t1, regs[3], regs[4], regs[5], bop))
    rest = regs[6:]
    tt = [t0, t1]
    k = 0
    while len(rest) >= 2:
        a("v_bitop3_b32 v%d, v%d, v%d, v%d bitop3:%s" % (tt[k], tt[k], rest[0], rest[1], bop))
        rest = rest[2:]
        k ^= 1
    assert not rest
    a("%s v%d, v%d, v%d" % (op2, t0, t0, t1))


def lds_wait(a, tag, vaddr, vtmp, off, cmp_ge_val, sres, sleep=1):
    a("s_mov_b32 s27, 0")
    a.label("LW_%s" % tag)
    a("ds_read_b32 v%d, v%d offset:%d" % (vtmp, vaddr, off))
    a("s_add_u32 s27, s27, 1")
    a("s_waitcnt lgkmcnt(0)")
    a("v_readfirstlane_b32 %s, v%d" % (sres, vtmp))
    a("s_cmp_gt_u32 s27, 0x%x" % (SPIN_MAX * 40))
    a.branch("s_cbranch_scc1 LWX_%s" % tag)
    a("s_cmp_ge_u32 %s, %d" % (sres, cmp_ge_val))
    a.branch("s_cbranch_scc1 LWX_%s" % tag)
    if sleep:
        a("s_sleep %d" % sleep)
    a.branch("s_branch LW_%s" % tag)
    a.label("LWX_%s" % tag)


def w_unit(a, W, ty, PF, PK, T, vst, filler=None):
    MX = T + 4
    ops = []
    first = True
    for c in range(2):
        b1, b2 = W + 8 * c, W + 8 * c + 4
        for b in (b1, b2):
            ops.append("v_alignbit_b32 v%d, v%d, v%d, s14" % (b, b + 1, b))
            ops.append("v_alignbit_b32 v%d, v%d, v%d, s14" % (b + 1, b + 2, b + 1))
        for d in range(2):
            ops.append("v_lshlrev_b32 v%d, 16, v%d" % (T, b1 + d))
            ops.append("v_and_b32 v%d, 0xffff0000, v%d" % (T + 1, b1 + d))
            ops.append("v_lshlrev_b32 v%d, 16, v%d" % (T + 2, b2 + d))
            ops.append("v_and_b32 v%d, 0xffff0000, v%d" % (T + 3, b2 + d))
            for u in range(2):
                base = PF + (2 * d + u) * 4
                ops.append("v_add_f32 v%d, v%d, v%d" % (base + c, T + u, T + 2 + u))
                ops.append("v_sub_f32 v%d, v%d, v%d" % (base + 2 + c, T + u, T + 2 + u))
                if first:
                    ops.append("v_max_f32 v%d, |v%d|, |v%d|" % (MX, base + c, base + 2 + c))
                    first = False
                else:
                    ops.append("v_max3_f32 v%d, |v%d|, |v%d|, v%d" % (MX, base + c, base + 2 + c, MX))
    ops += wave_allreduce_ops("v_max_f32", MX, T + 5)
    ops.append("v_lshrrev_b32 v%d, 23, v%d" % (MX, MX))
    ops.append("v_add_u32 v%d, 2, v%d" % (MX, MX))
    ops.append("v_max_u32 v%d, 0x61, v%d" % (MX, MX))
    ops.append("v_min_u32 v%d, 0xdc, v%d" % (MX, MX))
    ops.append("v_sub_u32 v%d, 0xfe, v%d" % (T + 5, MX))
    ops.append("v_lshlrev_b32 v%d, 23, v%d" % (T + 5, T + 5))
    ops.append("ds_write_b32 v%d, v%d offset:%d" % (T + 6, MX, L_EXP + 32 * ty))
    for e4 in range(4):
        base = PF + e4 * 4
        o = PK + 2 * e4
        ops.append("v_fma_mixlo_f16 v%d, v%d, v%d, 0" % (o, base, T + 5))
        ops.append("v_fma_mixlo_f16 v%d, v%d, v%d, 0" % (o + 1, base + 2, T + 5))
        ops.append("v_fma_mixhi_f16 v%d, v%d, v%d, 0" % (o, base + 1, T + 5))
        ops.append("v_fma_mixhi_f16 v%d, v%d, v%d, 0" % (o + 1, base + 3, T + 5))
    for e4 in range(4):
        ops.append("ds_write_b64 v%d, %s offset:%d" % (vst, vr(PK + 2 * e4, 2), (L_WSA, L_WSB)[ty] + e4 * 32))
    return ops


def poll_exit(a, tag, again_branch, sleep=0):
    a("s_add_u32 s27, s27, 1")
    a("s_cmp_gt_u32 s27, %d" % SPIN_MAX)
    a.branch("s_cbranch_scc1 %sX" % tag)
    if sleep:
        a.branch("s_cbranch_vccz %sX" % tag)
        a("s_sleep %d" % sleep)
        a.branch("s_branch %s" % tag)
    else:
        a.branch("s_cbranch_vccnz %s" % tag)
    a.label("%sX" % tag)


def lds_spec(a, tag, vz, vtmp, flag_off, ge, reads, vflagaddr=None):
    a("s_mov_b32 s27, 0")
    a.label("LS_%s" % tag)
    a("ds_read_b32 v%d, v%d offset:%d" % (vtmp, vz if vflagaddr is None else vflagaddr, flag_off))
    for r in reads:
        a(r)
    a("s_add_u32 s27, s27, 1")
    a("s_waitcnt lgkmcnt(%d)" % min(len(reads), 15))
    a("v_readfirstlane_b32 s16, v%d" % vtmp)
    a("s_cmp_gt_u32 s27, 0x%x" % (SPIN_MAX * 40))
    a.branch("s_cbranch_scc1 LSX_%s" % tag)
    a("s_cmp_ge_u32 s16, %d" % ge)
    a.branch("s_cbranch_scc0 LS_%s" % tag)
    a.label("LSX_%s" % tag)


def gen(a):
    a.raw(".globl %s" % KNAME)
    a.raw(".p2align 8")
    a.raw(".type %s,@function" % KNAME)
    a.raw("%s:" % KNAME)
    a("s_cmp_ge_u32 s2, 256")
    a.branch("s_cbranch_scc1 L_END")
    a("s_load_dwordx16 s[28:43], s[0:1], 0")
    a("s_load_dwordx2 s[4:5], s[0:1], 64")
    a("s_getpc_b64 s[6:7]")
    a.raw("L_PC:")
    a("v_lshrrev_b32 v3, 6, v0")
    a("s_lshr_b32 s16, s2, 3")
    a("s_lshl_b32 s16, s16, 10")
    a("v_lshl_add_u32 v1, v3, 7, s16")
    a("v_cmp_gt_u32 vcc, L_END-L_PC, v1")
    a("v_readfirstlane_b32 s3, v3")
    a("v_cndmask_b32 v1, 0, v1, vcc")
    a("global_load_dword v2, v1, s[6:7]")
    stamp(a, "start")
    a("v_mov_b32 v%d, v0" % VT)
    a("v_and_b32 v%d, 63, v0" % VL)
    a("v_and_b32 v%d, 31, v0" % VNU)
    a("v_bfe_u32 v%d, v0, 5, 1" % VH)
    a("v_lshlrev_b32 v%d, 4, v%d" % (V16, VL))
    a("s_and_b32 s12, s3, 3")
    a("s_lshr_b32 s13, s3, 2")
    a("s_and_b32 s17, s2, 31")
    a("s_lshr_b32 s18, s2, 5")
    a("s_lshl_b32 s18, s18, 7")
    a("s_add_u32 s17, s17, s18")
    a("s_lshl_b32 s18, s12, 5")
    a("s_add_u32 s17, s17, s18")
    a("s_mul_i32 s17, s17, 1026")
    a("s_lshl_b32 s18, s13, 9")
    a("s_add_u32 s17, s17, s18")
    a("s_add_u32 s17, s17, 2")
    a("s_and_b32 s14, s17, 2")
    a("s_lshl_b32 s14, s14, 3")
    a("s_and_b32 s17, s17, 0xfffffffc")
    a("s_add_u32 s18, s17, %d" % (1024 * 1026))
    a("s_bfe_u32 s16, s2, 0x30004")
    a("s_lshl_b32 s16, s16, 8")
    a("s_and_b32 s19, s2, 15")
    a("s_lshl_b32 s19, s19, 2")
    a("s_add_u32 s16, s16, s19")
    a("s_lshr_b32 s19, s2, 7")
    a("s_add_u32 s16, s16, s19")
    a("s_lshl_b32 s19, s12, 6")
    a("s_add_u32 s16, s16, s19")
    a("s_lshl_b32 s19, s13, 1")
    a("s_add_u32 s16, s16, s19")
    a("s_lshl_b32 s26, s16, 11")
    a("v_lshlrev_b32 v4, 6, v%d" % VNU)
    a("v_lshl_add_u32 v4, v%d, 4, v4" % VH)
    a("v_lshlrev_b32 v5, 3, v%d" % VL)
    ZR = 144
    for q in range(4):
        a("v_mov_b32 v%d, 0" % (ZR + q))
    XL, WA, WBR = 8, 16, 184
    a("s_waitcnt lgkmcnt(0)")
    stamp(a, "kernarg")
    srd(a, 8, 4, WS_BYTES)
    a("s_cmp_lg_u32 s3, 7")
    a.branch("s_cbranch_scc1 L_NOCLR")
    a("v_lshlrev_b32 v6, 11, v%d" % VL)
    a("s_lshl_b32 s19, s2, 3")
    a("s_add_u32 s19, s19, 0x%x" % FW)
    a("v_lshrrev_b32 v7, 1, v%d" % VL)
    a("v_lshlrev_b32 v7, 13, v7")
    a("v_and_b32 v1, 16, v%d" % V16)
    a("v_add_u32 v7, v7, v1")
    a("s_lshl_b32 s24, s2, 5")
    a("s_add_u32 s24, s24, 0x%x" % FN)
    a("s_mov_b64 exec, 0xffff")
    a("buffer_store_dwordx2 %s, v6, s[8:11], s19 offen sc1" % vr(ZR, 2))
    a("buffer_store_dwordx4 %s, v7, s[8:11], s24 offen sc1" % vr(ZR, 4))
    a("s_mov_b64 exec, 0xff")
    a("ds_write_b64 v5, %s offset:%d" % (vr(ZR, 2), L_MISC))
    a("s_mov_b64 exec, -1")
    a.label("L_NOCLR")
    for n, sp in enumerate((30, 32)):
        srd(a, 44, sp, WBYTES)
        a("buffer_load_dwordx3 %s, v5, s[44:47], s17 offen" % vr(WA + 8 * n, 3))
        a("buffer_load_dwordx3 %s, v5, s[44:47], s18 offen" % vr(WA + 8 * n + 4, 3))
    srd(a, 20, 28, XBYTES)
    a("buffer_load_dwordx4 %s, v4, s[20:23], s26 offen" % vr(XL, 4))
    a("buffer_load_dwordx4 %s, v4, s[20:23], s26 offen offset:32" % vr(XL + 4, 4))
    stamp(a, "ld issued")
    T = 88
    a("s_lshr_b32 s19, s3, 1")
    a("s_lshl_b32 s24, s19, 3")
    a("s_and_b32 s25, s3, 1")
    a("s_lshl_b32 s25, s25, 1")
    a("s_add_u32 s24, s24, s25")
    a("v_lshl_add_u32 v%d, v%d, 2, s24" % (T + 4, VH))
    a("v_cvt_f32_u32 v%d, v%d" % (T + 4, T + 4))
    a("v_add_f32 v%d, 1.0, v%d" % (T + 5, T + 4))
    a("v_cvt_f32_u32 v%d, v%d" % (T + 6, VNU))
    a("v_cmp_eq_u32 vcc, 0, v%d" % VNU)
    a("v_mov_b32 v%d, 0x42000000" % (T + 7))
    a("v_mul_f32 v%d, %s, v%d" % (T + 8, hexf(1.0 / 32), T + 6))
    a("v_cndmask_b32 v%d, v%d, v%d, vcc" % (T + 7, T + 6, T + 7))
    MEAN = 175
    a("v_mov_b32 v%d, %s" % (MEAN, hexf(1.0 / 32)))
    a("v_cndmask_b32 v%d, 0, v%d, vcc" % (MEAN, MEAN))
    a("v_mul_f32 v%d, %s, v%d" % (T + 7, hexf(1.0 / 1024), T + 7))
    a("v_mul_f32 v%d, %s, v%d" % (T + 9, hexf(1.0 / 1024), T + 6))
    a("v_mul_f32 v%d, %s, v%d" % (T + 10, hexf(1.0 / 2048), T + 6))
    A0 = T + 12
    for u in range(2):
        a("v_mul_f32 v%d, v%d, v%d" % (A0 + u, T + 4 + u, T + 8))
        a("v_mul_f32 v%d, v%d, v%d" % (A0 + 2 + u, T + 4 + u, T + 7))
        a("v_mul_f32 v%d, v%d, v%d" % (A0 + 4 + u, T + 4 + u, T + 9))
        a("v_fmamk_f32 v%d, v%d, %s, v%d" % (A0 + 6 + u, T + 4 + u, hexf(1.0 / 64), T + 10))
    for u in range(2):
        a("v_fract_f32 v%d, v%d" % (A0 + u, A0 + u))
    CO, SI_ = A0 + 8, A0 + 16
    for k in range(8):
        a("v_cos_f32 v%d, v%d" % (CO + k, A0 + k))
        a("v_sin_f32 v%d, v%d" % (SI_ + k, A0 + k))
    a("s_lshl_b32 s19, s19, 10")
    a("s_lshl_b32 s25, s25, 2")
    a("s_add_u32 s19, s19, s25")
    a("v_add_u32 v6, s19, v%d" % V16)
    a("s_lshl_b32 s19, s13, 10")
    a("s_lshl_b32 s25, s12, 2")
    a("s_add_u32 s19, s19, s25")
    a("v_add_u32 v7, s19, v%d" % V16)
    a("s_mov_b32 s19, %s" % hexf(1.0 / 32))
    O = A0 + 24
    for u in range(2):
        a("v_cvt_pk_f16_f32 v%d, v%d, v%d" % (O + u, CO + u, SI_ + u))
        a("v_cvt_pk_f16_f32 v%d, -v%d, v%d" % (O + 2 + u, SI_ + u, CO + u))
        a("v_fma_mixlo_f16 v%d, v%d, s19, 0" % (O + 4 + u, CO + 2 + u))
        a("v_fma_mixlo_f16 v%d, v%d, s19, 0" % (O + 6 + u, CO + 4 + u))
        a("v_fma_mixhi_f16 v%d, -v%d, s19, 0" % (O + 4 + u, SI_ + 2 + u))
        a("v_fma_mixhi_f16 v%d, -v%d, s19, 0" % (O + 6 + u, SI_ + 4 + u))
        a("v_cvt_pk_f16_f32 v%d, v%d, -v%d" % (O + 8 + u, CO + 6 + u, SI_ + 6 + u))
    a("v_cvt_pk_bf16_f32 v%d, v%d, v%d" % (O + 10, CO, CO + 1))
    a("v_cvt_pk_bf16_f32 v%d, -v%d, -v%d" % (O + 11, SI_, SI_ + 1))
    for k, tb in enumerate((L_FR, L_FI, L_TW0, L_TW, L_QT)):
        a("ds_write_b64 v6, %s offset:%d" % (vr(O + 2 * k, 2), tb))
    a("ds_write_b32 v7, v%d offset:%d" % (O + 10, L_CS))
    a("ds_write_b32 v7, v%d offset:%d" % (O + 11, L_CS + 2048))
    ID, C1, S1, TW0, M2 = 32, 40, 48, 56, 72
    a("v_lshrrev_b32 v%d, 1, v%d" % (T + 4, VNU))
    a("v_lshlrev_b32 v%d, 2, v%d" % (T + 5, VH))
    a("v_sub_u32 v%d, v%d, v%d" % (T + 4, T + 4, T + 5))
    a("v_and_b32 v%d, 1, v%d" % (T + 5, VNU))
    a("v_lshlrev_b32 v%d, 4, v%d" % (T + 6, T + 5))
    a("v_mov_b32 v%d, 0x3f80" % (T + 7))
    a("v_lshlrev_b32 v%d, v%d, v%d" % (T + 7, T + 6, T + 7))
    for t in range(2):
        for q in range(4):
            a("v_cmp_eq_u32 vcc, %d, v%d" % (8 * t + q, T + 4))
            a("v_cndmask_b32 v%d, 0, v%d, vcc" % (ID + 4 * t + q, T + 7))
    a("v_lshlrev_b32 v7, 12, v%d" % (T + 5))
    a("v_bfe_u32 v%d, v%d, 4, 1" % (T + 4, VNU))
    a("v_lshl_add_u32 v7, v%d, 7, v7" % (T + 4))
    a("v_bfe_u32 v%d, v%d, 2, 1" % (T + 4, VNU))
    a("v_lshl_add_u32 v7, v%d, 6, v7" % (T + 4))
    a("v_bfe_u32 v%d, v%d, 3, 1" % (T + 4, VNU))
    a("v_lshl_add_u32 v7, v%d, 5, v7" % (T + 4))
    a("v_bfe_u32 v%d, v%d, 1, 1" % (T + 4, VNU))
    a("v_lshl_add_u32 v7, v%d, 4, v7" % (T + 4))
    a("v_lshl_add_u32 v7, v%d, 9, v7" % VH)
    VST = 245
    a("s_lshl_b32 s19, s13, 3")
    a("s_add_u32 s19, s19, s12")
    a("v_lshl_add_u32 v%d, v%d, 2, s19" % (VST, VH))
    a("v_mul_u32_u24 v%d, %d, v%d" % (VST, BS, VST))
    a("v_and_b32 v%d, 7, v%d" % (T + 4, VL))
    a("v_mul_u32_u24 v%d, 144, v%d" % (T + 4, T + 4))
    a("v_add_u32 v%d, v%d, v%d" % (VST, VST, T + 4))
    a("v_bfe_u32 v%d, v%d, 3, 2" % (T + 4, VL))
    a("v_lshl_add_u32 v%d, v%d, 3, v%d" % (VST, T + 4, VST))
    VRR, VNS, VWR, VWS, VRW = 246, 247, 248, 249, 250
    a("v_and_b32 v%d, 1, v0" % VRR)
    a("v_mul_u32_u24 v%d, %d, v%d" % (VRR, 8192 + 64, VRR))
    a("v_lshrrev_b32 v%d, 1, v0" % (T + 4))
    a("v_lshl_add_u32 v%d, v%d, 2, v%d" % (VRR, T + 4, VRR))
    a("v_add_u32 v%d, %d, v%d" % (VRR, L_ROW, VRR))
    a("v_lshrrev_b32 v%d, 2, v0" % (T + 4))
    a("v_and_b32 v%d, 48, v%d" % (T + 5, V16))
    a("v_lshl_add_u32 v%d, v%d, 14, v%d" % (VNS, T + 4, T + 5))
    a("v_lshl_add_u32 v%d, v%d, 15, v%d" % (VWS, T + 4, T + 5))
    a("v_lshrrev_b32 v%d, 3, v0" % (T + 4))
    a("v_add_u32 v%d, 31, v%d" % (T + 4, T + 4))
    a("v_and_b32 v%d, 31, v%d" % (T + 4, T + 4))
    a("v_lshrrev_b32 v%d, 2, v%d" % (T + 5, T + 4))
    a("v_mul_u32_u24 v%d, 144, v%d" % (VWR, T + 5))
    a("v_and_b32 v%d, 3, v%d" % (T + 4, T + 4))
    a("v_lshl_add_u32 v%d, v%d, 5, v%d" % (VWR, T + 4, VWR))
    a("v_bfe_u32 v%d, v0, 1, 2" % (T + 4))
    a("v_lshl_add_u32 v%d, v%d, 3, v%d" % (VWR, T + 4, VWR))
    a("v_and_b32 v%d, 1, v0" % (T + 4))
    a("v_lshrrev_b32 v%d, 8, v0" % (T + 5))
    a("v_lshl_add_u32 v%d, v%d, 1, v%d" % (T + 4, T + 5, T + 4))
    a("v_mul_u32_u24 v%d, %d, v%d" % (T + 4, 2 * BS, T + 4))
    a("v_add_u32 v%d, v%d, v%d" % (VWR, VWR, T + 4))
    WT = 200
    a("s_lshl_b32 s19, s3, 2")
    a("v_mov_b32 v%d, s19" % (WT + 6))
    a("s_lshl_b32 s19, s3, 11")
    a("s_lshl_b32 s24, s13, 6")
    a("s_add_u32 s19, s19, s24")
    a("s_add_u32 s19, s19, %d" % L_ROW)
    a("v_add_u32 v%d, s19, v%d" % (VRW, V16))
    a("s_cmp_lg_u32 s3, 7")
    a.branch("s_cbranch_scc1 L_NOARR")
    srd(a, 44, 42, 256)
    a("s_and_b32 s25, s2, 63")
    a("s_lshl_b32 s25, s25, 2")
    a("v_mov_b32 v%d, 1" % (T + 8))
    a("s_waitcnt vmcnt(6)")
    a("s_mov_b64 exec, 1")
    a("buffer_atomic_add v%d, v%d, s[44:47], s25 offen sc1" % (T + 8, ZR))
    a("s_mov_b64 exec, -1")
    a.label("L_NOARR")
    stamp(a, "tables")
    a("s_waitcnt vmcnt(2)")
    stamp(a, "WA loaded")
    for o in w_unit(a, WA, 0, 208, 224, WT, VST):
        a(o)
    a("s_lshl_b32 s19, s2, 6")
    a("s_add_u32 s24, s19, 0x%x" % WBUF)
    a("s_waitcnt lgkmcnt(0)")
    a("s_barrier")
    R0 = 104
    for it in range(2):
        off = L_WSA + it * 8 * BS
        a("ds_read_b64 %s, v%d offset:%d" % (vr(R0 + 4 * it, 2), VWR, off))
        a("ds_read_b64 %s, v%d offset:%d" % (vr(R0 + 4 * it + 2, 2), VWR, off + BS))
    for q in range(4):
        a("ds_read_b128 %s, v%d offset:%d" % (vr(C1 + 4 * q, 4), V16, L_CS + q * 1024))
    for it in range(2):
        a("s_waitcnt lgkmcnt(%d)" % (6 - 2 * it))
        a("s_add_u32 s25, s24, 0x%x" % (it * 128 * 32768))
        a("buffer_store_dwordx4 %s, v%d, s[8:11], s25 offen sc1" % (vr(R0 + 4 * it, 4), VWS))
    for q in range(4):
        a("ds_read_b128 %s, v%d offset:%d" % (vr(TW0 + 4 * q, 4), V16, L_TW0 + q * 1024))
    for q in range(4):
        a("ds_read_b128 %s, v7 offset:%d" % (vr(M2 + 4 * q, 4), L_FR + q * 1024))
    for n, sp in enumerate((36, 38)):
        srd(a, 44, sp, WBYTES)
        a("buffer_load_dwordx3 %s, v5, s[44:47], s17 offen" % vr(WBR + 8 * n, 3))
        a("buffer_load_dwordx3 %s, v5, s[44:47], s18 offen" % vr(WBR + 8 * n + 4, 3))
    stamp(a, "PQA issued")
    D0, XA, TR, TI, OP = 88, 16, 112, 128, 152
    T = 168
    a("s_waitcnt vmcnt(6)")
    stamp(a, "x loaded")
    a("v_mfma_f32_32x32x16_bf16 %s, %s, %s, 0" % (vr(D0, 16), vr(XL, 4), vr(ID, 4)))
    a("v_mfma_f32_32x32x16_bf16 %s, %s, %s, %s" % (vr(D0, 16), vr(XL + 4, 4), vr(ID + 4, 4), vr(D0, 16)))
    for q in range(8):
        a("v_cvt_pk_bf16_f32 v%d, v%d, v%d" % (XA + q, D0 + 2 * q, D0 + 2 * q + 1))
    a("s_waitcnt lgkmcnt(0)")
    for t in range(2):
        a("v_mfma_f32_32x32x16_bf16 %s, %s, %s, %s" % (vr(TR, 16), vr(XA + 4 * t, 4), vr(C1 + 4 * t, 4), "0" if t == 0 else vr(TR, 16)))
    for t in range(2):
        a("v_mfma_f32_32x32x16_bf16 %s, %s, %s, %s" % (vr(TI, 16), vr(XA + 4 * t, 4), vr(S1 + 4 * t, 4), "0" if t == 0 else vr(TI, 16)))
    SM, SX, E2 = T, T + 1, T + 2
    a("v_add_f32 v%d, v%d, v%d" % (SM, TR, TR + 1))
    a("v_add_f32 v%d, v%d, v%d" % (SX, TR + 2, TR + 3))
    for r in range(4, 16, 2):
        a("v_add_f32 v%d, v%d, v%d" % (SM, SM, TR + r))
        a("v_add_f32 v%d, v%d, v%d" % (SX, SX, TR + r + 1))
    a("v_add_f32 v%d, v%d, v%d" % (SM, SM, SX))
    a("v_mov_b32 v%d, v%d" % (SX, SM))
    en_i = ["v_mul_f32 v%d, v%d, v%d" % (E2, TI, TI)] + ["v_fmac_f32 v%d, v%d, v%d" % (E2, TI + r, TI + r) for r in range(1, 16)]
    for o in en_i[:2]:
        a(o)
    a("v_permlane32_swap_b32 v%d, v%d" % (SM, SX))
    for o in en_i[2:4]:
        a(o)
    a("v_add_f32 v%d, v%d, v%d" % (SM, SM, SX))
    a("v_mul_f32 v%d, v%d, v%d" % (SM, SM, MEAN))
    for o in en_i[4:]:
        a(o)
    for r in range(16):
        a("v_sub_f32 v%d, v%d, v%d" % (TR + r, TR + r, SM))
    for r in range(16):
        if r % 2:
            a("v_fmac_f32 v%d, v%d, v%d" % (E2, TR + r, TR + r))
        elif r == 0:
            a("v_mul_f32 v%d, v%d, v%d" % (SX, TR, TR))
        else:
            a("v_fmac_f32 v%d, v%d, v%d" % (SX, TR + r, TR + r))
    a("v_add_f32 v%d, v%d, v%d" % (E2, E2, SX))
    a("v_mov_b32 v%d, %s" % (T + 3, hexf(EPS)))
    for o in wave_allreduce_ops("v_add_f32", E2, SX):
        a(o)
    a("v_fmamk_f32 v%d, v%d, %s, v%d" % (E2, E2, hexf(2.0 ** -15), T + 3))
    AS = T + 4
    a("v_rsq_f32 v%d, v%d" % (AS, E2))
    valu = []
    for t in range(4):
        for p in range(4):
            r = 4 * t + p
            valu.append("v_fma_mixlo_f16 v%d, v%d, v%d, 0" % (TR + r, TR + r, AS))
        for p in range(4):
            r = 4 * t + p
            valu.append("v_fma_mixhi_f16 v%d, v%d, v%d, 0" % (TR + r, TI + r, AS))
        ops = [cmul_ops(OP + 4 * t + p, TR + 4 * t + p, TW0 + 4 * t + p) for p in range(4)]
        valu += [o[0] for o in ops] + [o[1] for o in ops]
    mf = [(16 * (t + 1) + 2, "v_mfma_f32_32x32x16_f16 %s, %s, %s, %s" % (vr(D0, 16), vr(M2 + 4 * t, 4), vr(OP + 4 * t, 4), "0" if t == 0 else vr(D0, 16))) for t in range(4)]
    interleave(a, valu, mf)
    a("v_mul_f32 v%d, v%d, v%d" % (E2, E2, AS))
    a("v_mul_f32 v%d, %s, v%d" % (E2, hexf(32.0), E2))
    a("ds_write_b32 v%d, v%d offset:%d" % (WT + 6, E2, L_INV))
    a("ds_read_b128 %s, v%d offset:%d" % (vr(R0 + 16, 4), ZR, L_EXP))
    a("ds_read_b128 %s, v%d offset:%d" % (vr(R0 + 20, 4), ZR, L_EXP + 16))
    for q in range(8):
        a("v_cvt_pk_f16_f32 v%d, v%d, v%d" % (XA + q, D0 + 2 * q, D0 + 2 * q + 1))
    for t in range(2):
        a("ds_write_b128 v%d, %s offset:%d" % (VRW, vr(XA + 4 * t, 4), t * 1024))

    def sig_pack(R, D):
        for hf in range(2):
            b = R + 4 * hf
            a("v_lshl_or_b32 v%d, v%d, 8, v%d" % (D + hf, b + 1, b))
            a("v_lshl_or_b32 v%d, v%d, 16, v%d" % (D + hf, b + 2, D + hf))
            a("v_lshl_or_b32 v%d, v%d, 24, v%d" % (D + hf, b + 3, D + hf))

    a("s_waitcnt lgkmcnt(2)")
    sig_pack(R0 + 16, R0 + 24)
    a("v_lshlrev_b32 v6, 11, v%d" % VL)
    a("s_lshl_b32 s15, s2, 3")
    a("s_add_u32 s15, s15, 0x%x" % FW)
    a("s_waitcnt vmcnt(4) lgkmcnt(0)")
    stamp(a, "row done")
    a("s_barrier")
    for it in range(2):
        for ih in range(2):
            a("ds_read2st64_b32 %s, v%d offset0:%d offset1:%d" % (vr(R0 + 4 * it + 2 * ih, 2), VRR, 16 * ih + 4 * it, 16 * ih + 8 + 4 * it))
    a("s_cmp_lg_u32 s3, 7")
    a.branch("s_cbranch_scc1 L_NOFW")
    a("s_mov_b64 exec, 0xff")
    a("buffer_store_dwordx2 %s, v6, s[8:11], s15 offen sc1" % vr(R0 + 24, 2))
    a("s_mov_b64 exec, -1")
    a.label("L_NOFW")
    for it in range(2):
        a("s_waitcnt lgkmcnt(%d)" % (2 - 2 * it))
        a("s_add_u32 s25, s19, 0x%x" % (it * 128 * 16384))
        a("buffer_store_dwordx4 %s, v%d, s[8:11], s25 offen sc1" % (vr(R0 + 4 * it, 4), VNS))
    a("v_and_b32 v1, 255, v0")
    a("v_lshlrev_b32 v1, 4, v1")
    a("s_lshl_b32 s25, s13, 20")
    a("s_lshl_b32 s16, s2, 12")
    a("s_add_u32 s25, s25, s16")
    a("s_add_u32 s25, s25, 0x%x" % PART)
    a("buffer_store_dwordx4 %s, v1, s[8:11], s25 offen sc1" % vr(ZR, 4))
    a("s_cmp_lg_u32 s3, 6")
    a.branch("s_cbranch_scc1 L_NOAV")
    a("v_lshrrev_b32 v1, 4, v%d" % VL)
    a("v_lshlrev_b32 v1, 16, v1")
    a("v_and_b32 v3, 0xf0, v%d" % V16)
    a("v_add_u32 v1, v1, v3")
    a("s_lshl_b32 s25, s2, 8")
    a("s_add_u32 s25, s25, 0x%x" % AVEC)
    a("s_mov_b32 exec_hi, 0xffff")
    a("buffer_store_dwordx4 %s, v1, s[8:11], s25 offen sc1" % vr(ZR, 4))
    a("s_mov_b64 exec, -1")
    a.label("L_NOAV")
    stamp(a, "N issued")
    a("s_waitcnt vmcnt(4)")
    a("s_cmp_ge_u32 s3, 6")
    a.branch("s_cbranch_scc1 L_WBOK")
    a("s_waitcnt vmcnt(3)")
    a.label("L_WBOK")
    for o in w_unit(a, WBR, 1, 208, 224, WT, VST):
        a(o)
    a("v_and_b32 v1, 16, v%d" % V16)
    a("ds_read_b128 %s, v1 offset:%d" % (vr(R0 + 16, 4), L_INV))
    a("v_lshrrev_b32 v7, 1, v%d" % VL)
    a("v_lshl_add_u32 v7, v7, 13, v1")
    a("s_lshl_b32 s25, s2, 5")
    a("s_add_u32 s25, s25, 0x%x" % FN)
    a("s_waitcnt vmcnt(0) lgkmcnt(0)")
    stamp(a, "N acked")
    a("s_barrier")
    a("s_cmp_lg_u32 s3, 7")
    a.branch("s_cbranch_scc1 L_NOFN")
    a("s_mov_b64 exec, 0xffff")
    a("buffer_store_dwordx4 %s, v7, s[8:11], s25 offen sc1" % vr(R0 + 16, 4))
    a("s_mov_b64 exec, -1")
    a.label("L_NOFN")
    a("s_cmp_ge_u32 s3, 4")
    a.branch("s_cbranch_scc1 L_HELPER")
    n_common = _nst[0]

    SR, SI = 0, 16
    DAr, DAi, DBr, DBi = 32, 48, 64, 80
    OP, OQ = 96, 112
    TW, FR, FI = 128, 144, 160
    PP = [176, 208]
    VX, VY, VE, VF, VPS, VAL = 245, 247, 248, 249, 251, 252
    T0 = 253
    VZ = 255
    a("s_and_b32 s12, s3, 1")
    a("s_lshr_b32 s13, s3, 1")
    a("s_lshl_b32 s14, s2, 1")
    a("s_add_u32 s14, s14, s13")
    for q in range(4):
        a("ds_read_b128 %s, v%d offset:%d" % (vr(FR + 4 * q, 4), V16, L_FR + q * 1024))
        a("ds_read_b128 %s, v%d offset:%d" % (vr(FI + 4 * q, 4), V16, L_FI + q * 1024))
        a("ds_read_b128 %s, v%d offset:%d" % (vr(TW + 4 * q, 4), V16, L_TW + q * 1024))
    a("v_lshrrev_b32 v%d, 1, v%d" % (T0, VL))
    a("s_lshl_b32 s15, s12, 7")
    a("v_add_u32 v%d, s15, v%d" % (T0, T0))
    a("v_and_b32 v%d, 16, v%d" % (T0 + 1, V16))
    a("s_lshl_b32 s15, s13, 5")
    a("v_add_u32 v%d, s15, v%d" % (T0 + 1, T0 + 1))
    a("v_lshl_add_u32 v%d, v%d, 6, v%d" % (T0, T0, T0 + 1))
    for (vreg, x, sh, base) in ((VX, 0, 12, L_X), (VY, 1, 12, L_X), (VE, 0, 11, L_E), (VF, 2, 11, L_E)):
        a("s_xor_b32 s16, s3, %d" % x)
        a("s_lshl_b32 s16, s16, %d" % sh)
        a("s_add_u32 s16, s16, %d" % base)
        a("v_add_u32 v%d, s16, v%d" % (vreg, V16))
    a("s_lshl_b32 s16, s12, 1")
    a("s_add_u32 s16, s16, s13")
    a("s_lshl_b32 s16, s16, 4")
    a("v_lshrrev_b32 v%d, 2, v%d" % (VPS, VL))
    a("v_add_u32 v%d, s16, v%d" % (VPS, VPS))
    a("v_and_b32 v%d, 48, v%d" % (VAL, V16))
    a("v_lshl_add_u32 v%d, v%d, 14, v%d" % (VPS, VPS, VAL))
    a("s_lshl_b32 s16, s12, 7")
    a("v_add_u32 v%d, s16, v%d" % (VAL, VL))
    a("v_lshlrev_b32 v%d, 5, v%d" % (VAL, VAL))
    a("s_lshl_b32 s44, s2, 6")
    a("s_add_u32 s44, s44, 0x%x" % PART)
    a("s_and_b32 s45, s2, 7")
    a("s_lshl_b32 s45, s45, 13")
    a("s_lshl_b32 s18, s12, 12")
    a("s_add_u32 s18, s18, s45")
    a("s_add_u32 s18, s18, 0x%x" % FN)
    a("s_add_u32 s45, s45, 0x%x" % AVEC)
    a("s_lshl_b32 s24, s2, 14")
    a("s_add_u32 s17, s24, 4096")
    a("s_mul_i32 s46, s13, %d" % CS)
    a("s_lshl_b32 s47, s12, 12")
    a("s_add_u32 s47, s47, s46")
    a("s_add_u32 s47, s47, 4096")
    a("s_lshl_b32 s28, s3, 2")
    a("s_xor_b32 s29, s28, 4")
    a("s_xor_b32 s30, s28, 8")
    a("v_mov_b32 v%d, 0" % VZ)
    a("s_waitcnt lgkmcnt(0)")
    lds_wait(a, "CE", VZ, T0 + 1, LF_E, 1, "s15")
    a("s_mov_b32 s27, 0")
    if P["DN"]:
        a("s_sleep %d" % P["DN"])
    a.label("C_POLLN")
    for g in range(4):
        a("buffer_load_dwordx4 %s, v%d, s[8:11], s18 offen offset:%d sc1" % (vr(OQ + 4 * g, 4), V16, g * 1024))
    a("s_waitcnt vmcnt(0)")
    a("v_min3_u32 v%d, v%d, v%d, v%d" % (T0 + 1, OQ, OQ + 1, OQ + 2))
    a("v_min3_u32 v%d, v%d, v%d, v%d" % (DAr, OQ + 3, OQ + 4, OQ + 5))
    for k, q in enumerate(range(6, 16, 2)):
        t = (T0 + 1, DAr)[k % 2]
        a("v_min3_u32 v%d, v%d, v%d, v%d" % (t, t, OQ + q, OQ + q + 1))
    a("v_min_u32 v%d, v%d, v%d" % (T0 + 1, T0 + 1, DAr))
    a("v_cmp_eq_u32 vcc, 0, v%d" % (T0 + 1))
    poll_exit(a, "C_POLLN", None, P["DPN"])
    stamp(a, "FN seen")
    stamp_val(a, "s27", "pollsN")
    for g in range(4):
        a("buffer_load_dwordx4 %s, v%d, s[8:11], s%d offen offset:%d sc1" % (vr(OP + 4 * g, 4), T0, (24, 17)[g // 2], (g % 2) * 2048))
    a("s_lshl_b32 s16, s3, 13")
    a("s_add_u32 s31, s16, %d" % L_STASH)
    a("v_add_u32 v%d, s31, v%d" % (T0, V16))
    for g in range(4):
        a("ds_write_b128 v%d, %s offset:%d" % (T0, vr(OQ + 4 * g, 4), 4096 + g * 1024))
    lds_wait(a, "CW", VZ, T0 + 1, LF_W, 1, "s32")
    a("s_sub_u32 s25, 250, s32")
    a("s_lshl_b32 s25, s25, 23")
    for r in range(16):
        a("v_mul_f32 v%d, s25, v%d" % (OQ + r, OQ + r))

    def mf(kind, D, opreg, F, t, cinit):
        c = cinit if t == 0 else vr(D, 16)
        if kind == "A":
            return "v_mfma_f32_32x32x16_f16 %s, %s, %s, %s" % (vr(D, 16), vr(opreg + 4 * t, 4), vr(F + 4 * t, 4), c)
        return "v_mfma_f32_32x32x16_f16 %s, %s, %s, %s" % (vr(D, 16), vr(F + 4 * t, 4), vr(opreg + 4 * t, 4), c)

    def stage(kind, Dr, Di, opreg, valu, per, cr="0", ci="0"):
        mfs = []
        for t in range(4):
            rd = per * (t + 1) + 2
            mfs.append((rd, mf(kind, Dr, opreg, FR, t, cr)))
            mfs.append((rd + per // 2, mf(kind, Di, opreg, FI, t, ci)))
        interleave(a, valu, mfs)

    def twiddle_ops(Dr, Di, tmp):
        v = []
        for t in range(4):
            for p in range(4):
                r = 4 * t + p
                v.append("v_cvt_pk_f16_f32 v%d, v%d, v%d" % (tmp + r, Dr + r, Di + r))
            ops = [cmul_ops(OP + 4 * t + p, tmp + 4 * t + p, TW + 4 * t + p) for p in range(4)]
            v += [o[0] for o in ops] + [o[1] for o in ops]
        return v

    for layer in range(4):
        ty = layer % 2
        Pb, Qb = PP[ty], PP[ty] + 16
        a.comment("==== layer %d ====" % layer)
        if layer == 0:
            for t in range(4):
                a("s_waitcnt vmcnt(%d)" % (3 - t))
                a(mf("A", DAr, OP, FR, t, "0"))
                a("ds_write_b128 v%d, %s offset:%d" % (T0, vr(OP + 4 * t, 4), t * 1024))
                for r in range(4 * t, 4 * t + 4):
                    a("v_fma_mix_f32 v%d, v%d, v%d, 0 op_sel_hi:[1,0,0]" % (SR + r, OP + r, OQ + r))
                a(mf("A", DAi, OP, FI, t, "0"))
                for r in range(4 * t, 4 * t + 4):
                    a("v_fma_mix_f32 v%d, -v%d, v%d, 0 op_sel:[1,0,0] op_sel_hi:[1,0,0]" % (SI + r, OP + r, OQ + r))
            stamp(a, "N loaded")
            a("s_waitcnt lgkmcnt(0)")
        else:
            stamp(a, "layer start")
            v = []
            for t in range(4):
                for p in range(4):
                    r = 4 * t + p
                    v.append("v_fma_mixlo_f16 v%d, v%d, |v%d|, 0" % (OP + r, SR + r, DBr + r))
                for p in range(4):
                    r = 4 * t + p
                    v.append("v_fma_mixhi_f16 v%d, v%d, -|v%d|, 0" % (OP + r, SI + r, DBr + r))
            stage("A", DAr, DAi, OP, v, 8)
        if layer == 0:
            pass
        stage("B", DBr, DBi, OP, twiddle_ops(DAr, DAi, OQ), 12)
        a("v_mov_b32 v%d, s28" % T0)
        a("v_mov_b32 v%d, %d" % (T0 + 1, layer + 1))
        for g in range(4):
            for p in range(4):
                r = 4 * g + p
                a("v_cvt_pk_f16_f32 v%d, v%d, v%d" % (OP + r, DBr + r, DBi + r))
            a("ds_write_b128 v%d, %s offset:%d" % (VX, vr(OP + 4 * g, 4), g * 1024))
        a("ds_write_b32 v%d, v%d offset:%d" % (T0, T0 + 1, LF_X))
        own1 = ["v_pk_mul_f16 v%d, v%d, v%d op_sel:[0,0] op_sel_hi:[1,0] neg_hi:[1,0]" % (DBr + r, OP + r, Pb + r) for r in range(16)]
        own2 = ["v_pk_fma_f16 v%d, v%d, v%d, v%d op_sel:[1,1,0] op_sel_hi:[0,1,1] neg_lo:[1,0,0] neg_hi:[1,0,0]" % (DBr + r, OP + r, Pb + r, DBr + r) for r in range(16)]
        if layer == 0:
            a("s_add_u32 s16, s46, %d" % L_PQ[0])
            a("v_add_u32 v%d, s16, v%d" % (DAr, V16))
            a("s_add_u32 s16, s47, %d" % L_PQ[0])
            a("v_add_u32 v%d, s16, v%d" % (DAr + 1, V16))
            reads = ["ds_read_b128 %s, v%d offset:%d" % (vr(Pb + 4 * g, 4), DAr, g * 1024) for g in range(4)]
            reads += ["ds_read_b128 %s, v%d offset:%d" % (vr(Qb + 4 * g, 4), DAr + 1, g * 1024) for g in range(4)]
            lds_spec(a, "PQ0", VZ, T0 + 1, LF_PQ, 4, reads)
            a("s_waitcnt lgkmcnt(0)")
        for x in own1[:8]:
            a(x)
        a("v_mov_b32 v%d, s29" % T0)
        reads = ["ds_read_b128 %s, v%d offset:%d" % (vr(OQ + 4 * g, 4), VY, g * 1024) for g in range(4)]
        a("ds_read_b32 v%d, v%d offset:%d" % (T0 + 1, T0, LF_X))
        for r_ in reads:
            a(r_)
        for x in own1[8:] + own2:
            a(x)
        a("s_waitcnt lgkmcnt(4)")
        a("v_readfirstlane_b32 s16, v%d" % (T0 + 1))
        a("s_cmp_ge_u32 s16, %d" % (layer + 1))
        a.branch("s_cbranch_scc1 C_XOK_%d" % layer)
        lds_spec(a, "X%d" % layer, VZ, T0 + 1, LF_X, layer + 1, reads, vflagaddr=T0)
        a.label("C_XOK_%d" % layer)
        v = []
        for t in range(4):
            v.append("s_waitcnt lgkmcnt(%d)" % (3 - t))
            for p in range(4):
                r = 4 * t + p
                v.append("v_pk_fma_f16 v%d, v%d, v%d, v%d op_sel:[0,0,0] op_sel_hi:[1,0,1] neg_hi:[1,0,0]" % (DBr + r, OQ + r, Qb + r, DBr + r))
            for p in range(4):
                r = 4 * t + p
                v.append("v_pk_fma_f16 v%d, v%d, v%d, v%d op_sel:[1,1,0] op_sel_hi:[0,1,1] neg_lo:[1,0,0] neg_hi:[1,0,0]" % (DBr + r, OQ + r, Qb + r, DBr + r))
        stage("A", DAr, DAi, DBr, v, 9)
        stage("B", SR, SI, OP, twiddle_ops(DAr, DAi, OQ), 12, cr=vr(SR, 16), ci=vr(SI, 16))
        if layer == 3:
            break
        a("v_mov_b32 v%d, s28" % T0)
        a("v_mov_b32 v%d, %d" % (T0 + 1, layer + 1))
        a("v_mov_b32 v%d, s30" % DBi)
        a("v_mov_b32 v%d, 1" % (DBi + 2))
        a("s_cmp_lg_u32 s14, 387")
        a.branch("s_cbranch_scc1 CC_REG_%d" % layer)
        for r in range(16):
            a("v_mov_b32 v%d, 0" % (SI + r))
        for r in range(16):
            a("v_mul_f32 v%d, %s, v%d" % (DAi + r, hexf(0.7071067811865476), SR + r))
        for r in range(16):
            a("v_mul_f32 v%d, v%d, v%d" % (DAr + r, DAi + r, DAi + r))
        a("s_cmp_eq_u32 s13, 0")
        a.branch("s_cbranch_scc1 CC_S0_%d" % layer)
        a.branch("s_branch CC_S1_%d" % layer)
        a.label("CC_REG_%d" % layer)
        a("s_cmp_eq_u32 s13, 0")
        a.branch("s_cbranch_scc0 CC_E1_%d" % layer)
        for variant in range(2):
            send = DAr + (8 if variant == 0 else 0)
            keep = DAr + (0 if variant == 0 else 8)
            so = send - DAr
            ko = keep - DAr
            if variant == 1:
                a.label("CC_E1_%d" % layer)
            for r in range(8):
                a("v_mul_f32 v%d, v%d, v%d" % (send + r, SR + so + r, SR + so + r))
            for r in range(8):
                a("v_fmac_f32 v%d, v%d, v%d" % (send + r, SI + so + r, SI + so + r))
            a("ds_write_b128 v%d, %s" % (VE, vr(send, 4)))
            a("ds_write_b128 v%d, %s offset:1024" % (VE, vr(send + 4, 4)))
            a("ds_write_b32 v%d, v%d offset:%d" % (T0, T0 + 1, LF_EN))
            for r in range(8):
                a("v_mul_f32 v%d, v%d, v%d" % (keep + r, SR + ko + r, SR + ko + r))
            for r in range(8):
                a("v_fmac_f32 v%d, v%d, v%d" % (keep + r, SI + ko + r, SI + ko + r))
            a.branch("s_branch CC_R%d_%d" % (variant, layer))
            a.label("CC_S%d_%d" % (variant, layer))
            a("ds_write_b128 v%d, %s" % (VE, vr(send, 4)))
            a("ds_write_b128 v%d, %s offset:1024" % (VE, vr(send + 4, 4)))
            a("ds_write_b32 v%d, v%d offset:%d" % (T0, T0 + 1, LF_EN))
            a.label("CC_R%d_%d" % (variant, layer))
            reads = ["ds_read_b128 %s, v%d" % (vr(DAi, 4), VF), "ds_read_b128 %s, v%d offset:1024" % (vr(DAi + 4, 4), VF)]
            lds_spec(a, "EN%d_%d" % (variant, layer), VZ, DBi + 1, LF_EN, layer + 1, reads, vflagaddr=DBi)
            a("s_waitcnt lgkmcnt(0)")
            for q in range(8):
                a("v_add_f32 v%d, v%d, v%d" % (DAi + q, DAi + q, keep + q))
            if variant == 0:
                a.branch("s_branch CC_E2_%d" % layer)
        a.label("CC_E2_%d" % layer)
        for q in range(4):
            a("v_cvt_pk_bf16_f32 v%d, v%d, v%d" % (DAi + 8 + q, DAi + 2 * q, DAi + 2 * q + 1))
        for q in range(4):
            a("v_or_b32 v%d, 0x80008000, v%d" % (DAi + 8 + q, DAi + 8 + q))
        a("buffer_store_dwordx4 %s, v%d, s[8:11], s44 offen sc1" % (vr(DAi + 8, 4), VPS))
        a("s_mov_b64 exec, 1")
        a("ds_add_u32 v%d, v%d offset:%d" % (VZ, DBi + 2, LF_PS))
        a("s_mov_b64 exec, -1")
        a("s_add_u32 s44, s44, 0x100000")
        stamp(a, "part stored")
        if layer == 0:
            lds_wait(a, "CB", VZ, T0, LF_B, 1, "s33", sleep=2)
            a("s_sub_u32 s34, s32, s33")
            a("s_add_u32 s34, s34, 127")
            a("s_lshl_b32 s34, s34, 23")
            a("s_sub_u32 s35, s33, s32")
            a("s_add_u32 s35, s35, 127")
            a("s_lshl_b32 s35, s35, 23")
        for r in range(32):
            a("v_mul_f32 v%d, s%d, v%d" % (SR + r, 34 if ty == 0 else 35, SR + r))
        if layer == 0:
            a("s_add_u32 s16, s46, %d" % L_PQ[1])
            a("v_add_u32 v%d, s16, v%d" % (DAr, V16))
            a("s_add_u32 s16, s47, %d" % L_PQ[1])
            a("v_add_u32 v%d, s16, v%d" % (DAr + 1, V16))
            lds_wait(a, "CPB", VZ, T0, LF_PQ, 8, "s16", sleep=2)
            for g in range(4):
                a("ds_read_b128 %s, v%d offset:%d" % (vr(PP[1] + 4 * g, 4), DAr, g * 1024))
                a("ds_read_b128 %s, v%d offset:%d" % (vr(PP[1] + 16 + 4 * g, 4), DAr + 1, g * 1024))
        if layer == 2:
            a("v_add_u32 v%d, s31, v%d" % (T0 + 1, V16))
            for g in range(4):
                a("ds_read_b128 %s, v%d offset:%d" % (vr(PP[0] + 4 * g, 4), T0 + 1, g * 1024))
                a("ds_read_b128 %s, v%d offset:%d" % (vr(PP[0] + 16 + 4 * g, 4), T0 + 1, 4096 + g * 1024))
            a("s_sub_u32 s25, 250, s33")
            a("s_lshl_b32 s25, s25, 23")
            a("s_waitcnt lgkmcnt(0)")
            for r in range(16):
                a("v_mul_f32 v%d, s25, v%d" % (PP[0] + 16 + r, PP[0] + 16 + r))
        lds_wait(a, "CH%d" % layer, VZ, T0, LF_H1, layer + 1, "s16", sleep=1)
        stamp(a, "h1 seen")
        a("s_mov_b32 s27, 0")
        if P["D2"]:
            a("s_sleep %d" % P["D2"])
        a.label("C_POLL2_%d" % layer)
        for g in range(4):
            a("buffer_load_dwordx4 %s, v%d, s[8:11], s45 offen offset:%d sc1" % (vr(DBr + 4 * g, 4), VAL, (g // 2) * 2048 + (g % 2) * 16))
        a("s_waitcnt vmcnt(0)")
        and_or_tree(a, range(DBr, DBr + 16), T0, T0 + 1, True)
        a("v_cmp_le_i32 vcc, 0, v%d" % T0)
        poll_exit(a, "C_POLL2_%d" % layer, None)
        a("s_add_u32 s45, s45, 0x10000")
        stamp_val(a, "s27", "polls2")
    NN, IO = PP[0], PP[0] + 16
    a("v_lshrrev_b32 v%d, 2, v%d" % (T0, VL))
    a("s_lshl_b32 s16, s12, 6")
    a("v_add_u32 v%d, s16, v%d" % (T0, T0))
    a("v_and_b32 v%d, 48, v%d" % (T0 + 1, V16))
    a("v_lshl_add_u32 v%d, v%d, 15, v%d" % (T0, T0, T0 + 1))
    a("s_lshl_b32 s16, s14, 6")
    a("s_add_u32 s16, s16, 0x%x" % DBUF)
    a("s_mov_b32 s17, 0x3c003c00")
    a("s_cmp_eq_u32 s14, 387")
    a("s_cselect_b32 s17, 0x00003800, s17")
    a("s_lshl_b32 s15, s33, 23")
    a("v_mov_b32 v%d, 1" % (T0 + 1))
    for g in range(4):
        for p in range(4):
            r = 4 * g + p
            a("v_fma_mixlo_f16 v%d, v%d, -v%d, v%d op_sel_hi:[1,0,0]" % (DAr + r, NN + r, IO + r, SR + r))
        for p in range(4):
            r = 4 * g + p
            a("v_fma_mixhi_f16 v%d, v%d, v%d, v%d op_sel:[1,0,0] op_sel_hi:[1,0,0]" % (DAr + r, NN + r, IO + r, SI + r))
        for p in range(4):
            r = 4 * g + p
            a("v_pk_mul_f16 v%d, v%d, s17" % (DAr + r, DAr + r))
        for p in range(4):
            r = 4 * g + p
            a("v_or_b32 v%d, 1, v%d" % (DAr + r, DAr + r))
        a("buffer_store_dwordx4 %s, v%d, s[8:11], s16 offen sc1" % (vr(DAr + 4 * g, 4), T0))
        if g < 3:
            a("s_add_u32 s16, s16, 0x80000")
    a("s_mov_b64 exec, 1")
    a("ds_add_u32 v%d, v%d offset:%d" % (VZ, T0 + 1, LF_DS))
    a("s_mov_b64 exec, -1")
    stamp(a, "delta stored")
    n_comp = _nst[0]
    a.branch("s_branch L_FINAL")

    a.label("L_HELPER")
    _nst[0] = n_common
    H = 0
    VHT, VQT, VPW, VSG, VSH, VAS, VPL = 245, 247, 251, 252, 253, 254, 31
    VZ = 255
    ONE = 30
    a("v_mov_b32 v%d, 0" % VZ)
    a("v_mov_b32 v%d, 1" % ONE)
    a("s_cmp_lg_u32 s3, 4")
    a.branch("s_cbranch_scc1 H_SETUP")
    srd(a, 44, 42, 256)
    a("v_lshlrev_b32 v%d, 2, v%d" % (H + 1, VL))
    a("s_mov_b32 s27, 0")
    a.label("H_POLLE")
    a("buffer_load_dword v%d, v%d, s[44:47], 0 offen sc1" % (H + 2, H + 1))
    a("s_waitcnt vmcnt(0)")
    a("v_cmp_ne_u32 vcc, 4, v%d" % (H + 2))
    poll_exit(a, "H_POLLE", None, 4)
    a("ds_write_b32 v%d, v%d offset:%d" % (VZ, ONE, LF_E))
    a.label("H_SETUP")
    stamp(a, "early ok")
    a("v_and_b32 v%d, 255, v%d" % (H, VT))
    a("v_lshlrev_b32 v%d, 4, v%d" % (VHT, H))
    a("v_lshrrev_b32 v%d, 2, v%d" % (H + 1, H))
    a("v_and_b32 v%d, 1, v%d" % (H + 2, H))
    a("v_lshlrev_b32 v%d, 4, v%d" % (VQT, H + 1))
    a("v_lshl_add_u32 v%d, v%d, 3, v%d" % (VQT, H + 2, VQT))
    a("v_bfe_u32 v%d, v%d, 1, 1" % (H + 3, H))
    a("v_mul_u32_u24 v%d, %d, v%d" % (H + 3, CS, H + 3))
    a("v_add_u32 v%d, v%d, v%d" % (VPW, VQT, H + 3))
    a("v_lshlrev_b32 v%d, 2, v%d" % (VSG, H + 1))
    a("v_lshlrev_b32 v%d, 4, v%d" % (VSH, H + 2))
    QT = 16
    for g in range(4):
        a("ds_read_b64 %s, v%d offset:%d" % (vr(QT + 2 * g, 2), VQT, L_QT + g * 1024))
    a("s_lshl_b32 s46, s2, 15")
    a("s_add_u32 s46, s46, 0x%x" % WBUF)
    a("s_and_b32 s47, s2, 7")
    a("s_lshl_b32 s47, s47, 11")
    a("s_add_u32 s47, s47, 0x%x" % FW)

    def flag_poll(tag, ty, lf, emin_sreg):
        FL = 32
        a("v_lshlrev_b32 v%d, 5, v%d" % (H + 1, VL))
        a("s_add_u32 s16, s47, %d" % (ty * 16384))
        a("s_mov_b32 s27, 0")
        a.label(tag)
        a("buffer_load_dwordx4 %s, v%d, s[8:11], s16 offen sc1" % (vr(FL, 4), H + 1))
        a("buffer_load_dwordx4 %s, v%d, s[8:11], s16 offen offset:16 sc1" % (vr(FL + 4, 4), H + 1))
        a("s_waitcnt vmcnt(0)")
        a("v_min3_u32 v%d, v%d, v%d, v%d" % (H + 2, FL, FL + 1, FL + 2))
        a("v_min3_u32 v%d, v%d, v%d, v%d" % (H + 3, FL + 3, FL + 4, FL + 5))
        a("v_min3_u32 v%d, v%d, v%d, v%d" % (H + 2, H + 2, FL + 6, FL + 7))
        a("v_min_u32 v%d, v%d, v%d" % (H + 2, H + 2, H + 3))
        a("v_cmp_eq_u32 vcc, 0, v%d" % (H + 2))
        poll_exit(a, tag, None, 2)
        a("s_cmp_ge_u32 s2, 128")
        a("s_cselect_b64 vcc, -1, 0")
        for q in range(4):
            a("v_cndmask_b32 v%d, v%d, v%d, vcc" % (FL + 8 + q, FL + 2 * q, FL + 2 * q + 1))
        a("ds_write_b128 v%d, %s offset:%d" % (V16, vr(FL + 8, 4), L_SIGT + ty * 1024))
        for q in range(8):
            a("v_and_b32 v%d, 0x00ff00ff, v%d" % (FL + 12 + q, FL + q))
            a("v_pk_lshrrev_b16 v%d, 8, v%d op_sel_hi:[0,1]" % (FL + q, FL + q))
        for q in range(8):
            a("v_pk_max_u16 v%d, v%d, v%d" % (FL + q, FL + q, FL + 12 + q))
        for st in (4, 2, 1):
            for q in range(st):
                a("v_pk_max_u16 v%d, v%d, v%d" % (FL + q, FL + q, FL + q + st))
        a("v_lshrrev_b32 v%d, 16, v%d" % (FL + 1, FL))
        a("v_and_b32 v%d, 0xffff, v%d" % (FL, FL))
        a("v_max_u32 v%d, v%d, v%d" % (FL, FL, FL + 1))
        for o in wave_allreduce_ops("v_max_u32", FL, FL + 1):
            a(o)
        a("v_max_u32 v%d, %s, v%d" % (FL, emin_sreg, FL))
        a("v_min_u32 v%d, 0xdc, v%d" % (FL, FL))
        a("ds_write_b32 v%d, v%d offset:%d" % (VZ, FL, lf))

    def pq_loads(ty):
        for g in range(4):
            a("s_add_u32 s16, s46, %d" % (ty * 16384 + g * 4096))
            a("buffer_load_dwordx4 %s, v%d, s[8:11], s16 offen sc1" % (vr(64 + 4 * g, 4), VHT))
        for g in range(4):
            a("ds_read_b32 v%d, v%d offset:%d" % (80 + g, VSG, L_SIGT + ty * 1024 + g * 256))

    def pq_factors(sK):
        for g in range(4):
            a("v_lshrrev_b32 v%d, v%d, v%d" % (80 + g, VSH, 80 + g))
        for g in range(4):
            for u in range(2):
                a("v_bfe_u32 v%d, v%d, %d, 8" % (84 + 2 * g + u, 80 + g, 8 * u))
        for k in range(8):
            a("v_lshl_add_u32 v%d, v%d, 23, %s" % (84 + k, 84 + k, sK))
        for k in range(8):
            a("v_cvt_pk_f16_f32 v%d, v%d, v%d" % (84 + k, 84 + k, 84 + k))
        for k in range(8):
            a("v_pk_mul_f16 v%d, v%d, v%d" % (92 + k, QT + k, 84 + k))

    def pq_process(ty, younger):
        LD, F, QF, TT = 64, 84, 92, 100
        a("v_add_u32 v%d, %d, v%d" % (H + 1, L_PQ[ty], VPW))
        for g in range(4):
            a("s_waitcnt vmcnt(%d)" % (3 - g + younger))
            o = TT + 8 * g
            for u in range(2):
                a("v_pk_mul_f16 v%d, v%d, v%d" % (o + u, LD + 4 * g + 2 * u, F + 2 * g + u))
                a("v_pk_mul_f16 v%d, v%d, v%d op_sel:[0,0] op_sel_hi:[1,0]" % (o + 6 + u, LD + 4 * g + 2 * u + 1, QF + 2 * g + u))
            for u in range(2):
                Qr = LD + 4 * g + 2 * u + 1
                a("v_pk_fma_f16 v%d, v%d, v%d, v%d op_sel:[1,1,0] op_sel_hi:[0,1,1] neg_lo:[1,0,0]" % (o + 2 + u, Qr, QF + 2 * g + u, o + 6 + u))
                a("v_pk_fma_f16 v%d, v%d, v%d, v%d op_sel:[1,1,0] op_sel_hi:[0,1,1] neg_hi:[1,0,0]" % (o + 4 + u, Qr, QF + 2 * g + u, o + 6 + u))
            for k in range(3):
                a("ds_write_b64 v%d, %s offset:%d" % (H + 1, vr(o + 2 * k, 2), k * 4096 + g * 1024))
        a("s_mov_b64 exec, 1")
        a("ds_add_u32 v%d, v%d offset:%d" % (VZ, ONE, LF_PQ))
        a("s_mov_b64 exec, -1")

    a("s_cmp_lg_u32 s3, 4")
    a.branch("s_cbranch_scc1 H_W0")
    if P["DW"]:
        a("s_sleep %d" % P["DW"])
    a("s_mov_b32 s17, 0x61")
    flag_poll("H_POLLW", 0, LF_W, "s17")
    a.label("H_W0")
    lds_wait(a, "HW", VZ, H + 1, LF_W, 1, "s32")
    stamp(a, "FW seen")
    pq_loads(0)
    a("v_subrev_u32 v%d, %d, v%d" % (H + 4, 4 * BS, VWR))
    a("v_subrev_u32 v%d, %d, v%d" % (H + 5, 64 * 32768, VWS))
    SB = 140
    for it in range(4):
        off = L_WSB + it * 4 * BS
        a("ds_read_b64 %s, v%d offset:%d" % (vr(SB + 4 * it, 2), H + 4, off))
        a("ds_read_b64 %s, v%d offset:%d" % (vr(SB + 4 * it + 2, 2), H + 4, off + BS))
    a("s_sub_u32 s24, 127, s32")
    a("s_lshl_b32 s24, s24, 23")
    a("s_add_u32 s17, s19, 0x%x" % (WBUF + 16384))
    a("s_waitcnt lgkmcnt(8)")
    pq_factors("s24")
    for it in range(4):
        a("s_waitcnt lgkmcnt(%d)" % (6 - 2 * it))
        a("s_add_u32 s16, s17, 0x%x" % (it * 64 * 32768))
        a("buffer_store_dwordx4 %s, v%d, s[8:11], s16 offen sc1" % (vr(SB + 4 * it, 4), H + 5))
    pq_process(0, 4)
    stamp(a, "pqA")
    a("ds_read_b128 %s, v%d offset:%d" % (vr(40, 4), VZ, L_EXP + 32))
    a("ds_read_b128 %s, v%d offset:%d" % (vr(44, 4), VZ, L_EXP + 48))
    a("s_waitcnt vmcnt(0)")
    a("s_mov_b64 exec, 1")
    a("ds_add_u32 v%d, v%d offset:%d" % (VZ, ONE, LF_BS))
    a("s_mov_b64 exec, -1")
    for q in range(4):
        a("v_mov_b32 v%d, 0" % (H + 4 + q))
    a("s_cmp_lg_u32 s3, 5")
    a.branch("s_cbranch_scc1 H_B0")
    a("s_waitcnt lgkmcnt(0)")
    sig_pack(40, 48)
    a("v_lshlrev_b32 v%d, 11, v%d" % (H + 2, VL))
    a("s_lshl_b32 s17, s2, 3")
    a("s_add_u32 s17, s17, 0x%x" % FB)
    lds_wait(a, "HBS", VZ, H + 1, LF_BS, 4, "s16")
    a("s_mov_b64 exec, 0xff")
    a("buffer_store_dwordx2 %s, v%d, s[8:11], s17 offen sc1" % (vr(48, 2), H + 2))
    a("s_mov_b64 exec, -1")
    a("s_sleep 12")
    flag_poll("H_POLLB", 1, LF_B, "s32")
    a.label("H_B0")
    lds_wait(a, "HB", VZ, H + 1, LF_B, 1, "s33", sleep=2)
    stamp(a, "FB seen")
    pq_loads(1)
    a("s_sub_u32 s24, 127, s33")
    a("s_lshl_b32 s24, s24, 23")
    a("s_waitcnt lgkmcnt(0)")
    pq_factors("s24")
    pq_process(1, 0)
    stamp(a, "pqB")
    a("s_lshl_b32 s15, s33, 23")
    a("s_cmp_eq_u32 s3, 4")
    a.branch("s_cbranch_scc1 H_RED")
    lds_wait(a, "HC", VZ, H + 1, LF_H1, 1, "s16", sleep=4)
    a("s_sub_u32 s16, s3, 5")
    a("s_lshl_b32 s16, s16, 10")
    a("s_lshl_b32 s17, s2, 14")
    a("s_add_u32 s17, s17, s16")
    a("s_add_u32 s17, s17, 0x%x" % DBUF)
    for k in range(5):
        a("buffer_store_dwordx4 %s, v%d, s[8:11], s17 offen sc1" % (vr(H + 4, 4), V16))
        a("s_add_u32 s17, s17, 3072")
    a("s_lshl_b32 s17, s2, 14")
    a("s_add_u32 s17, s17, 0x%x" % (DBUF + 15 * 1024))
    a("s_lshl_b32 s18, s2, 12")
    a("s_add_u32 s18, s18, 0x%x" % (PART + 2 * MB))
    a("s_lshl_b32 s16, s16, 1")
    a("s_add_u32 s24, s18, s16")
    a("s_sub_u32 s25, s24, 1024")
    a("s_cmp_eq_u32 s3, 5")
    a("s_cselect_b32 s25, s17, s25")
    a("s_cmp_eq_u32 s3, 7")
    a("s_cselect_b32 s24, s25, s24")
    a("buffer_store_dwordx4 %s, v%d, s[8:11], s24 offen sc1" % (vr(H + 4, 4), V16))
    a("buffer_store_dwordx4 %s, v%d, s[8:11], s25 offen sc1" % (vr(H + 4, 4), V16))
    a("s_waitcnt vmcnt(0)")
    a("s_mov_b64 exec, 1")
    a("ds_add_u32 v%d, v%d offset:%d" % (VZ, ONE, LF_BS))
    a("s_mov_b64 exec, -1")
    if STAMPS:
        for k in range(6):
            a("s_mov_b32 s%d, 0" % (50 + _nst[0] + k))
    a.branch("s_branch L_FINAL")
    a.label("H_RED")
    SEL = 24
    a("v_bfe_u32 v%d, v%d, 1, 2" % (H + 1, VL))
    a("v_and_b32 v%d, 1, v%d" % (H + 2, VL))
    a("v_lshlrev_b32 v%d, 4, v%d" % (H + 2, H + 2))
    a("v_mov_b32 v%d, 0x3f80" % (H + 3))
    a("v_lshlrev_b32 v%d, v%d, v%d" % (H + 3, H + 2, H + 3))
    for d in range(4):
        a("v_cmp_eq_u32 vcc, %d, v%d" % (d, H + 1))
        a("v_cndmask_b32 v%d, 0, v%d, vcc" % (SEL + d, H + 3))
    a("v_and_b32 v%d, 7, v%d" % (VAS, VL))
    a("v_lshlrev_b32 v%d, 13, v%d" % (VAS, VAS))
    a("v_and_b32 v%d, 16, v%d" % (H + 1, VL))
    a("v_add_u32 v%d, v%d, v%d" % (VAS, VAS, H + 1))
    a("s_lshr_b32 s44, s2, 5")
    a("s_lshl_b32 s44, s44, 3")
    a("s_and_b32 s45, s2, 7")
    a("s_add_u32 s44, s44, s45")
    a("s_bfe_u32 s46, s2, 0x20003")
    a("s_lshl_b32 s45, s44, 2")
    a("s_add_u32 s45, s45, s46")
    a("s_lshl_b32 s45, s45, 5")
    a("s_add_u32 s45, s45, 0x%x" % AVEC)
    a("s_lshl_b32 s44, s44, 14")
    a("s_lshl_b32 s46, s46, 4")
    a("s_add_u32 s44, s44, s46")
    a("s_add_u32 s44, s44, 0x%x" % PART)
    a("v_lshlrev_b32 v%d, 6, v%d" % (VPL, VL))
    for k, sE in enumerate(("s32", "s33")):
        a("s_sub_u32 s16, 254, %s" % sE)
        a("s_lshl_b32 s16, s16, 23")
        a("v_mov_b32 v%d, s16" % (8 + k))
        a("v_mul_f32 v%d, v%d, v%d" % (8 + k, 8 + k, 8 + k))
        a("v_mul_f32 v%d, %s, v%d" % (8 + k, hexf(EPS), 8 + k))
    a("s_sub_u32 s34, s33, s32")
    a("s_add_u32 s34, s34, 126")
    a("s_lshl_b32 s34, s34, 23")
    a("s_sub_u32 s35, s32, s33")
    a("s_add_u32 s35, s35, 126")
    a("s_lshl_b32 s35, s35, 23")
    a("s_mov_b32 s36, %s" % hexf(1.0 / 2048))
    for layer in range(3):
        ty = layer % 2
        PB, RD = 32, 48
        if layer == 1:
            lds_wait(a, "HBS2", VZ, H + 1, LF_BS, 7, "s16", sleep=2)
        lds_wait(a, "HPS%d" % layer, VZ, H + 1, LF_PS, 4 * (layer + 1), "s16", sleep=1)
        a("s_mov_b32 s27, 0")
        if P["D1"]:
            a("s_sleep %d" % P["D1"])
        a.label("H_POLL1_%d" % layer)
        for q in range(4):
            a("s_add_u32 s16, s44, %d" % (q * 4096 + layer * MB))
            a("buffer_load_dwordx4 %s, v%d, s[8:11], s16 offen sc1" % (vr(PB + 4 * q, 4), VPL))
        a("s_waitcnt vmcnt(0)")
        and_or_tree(a, range(PB, PB + 16), H + 1, H + 2, True)
        a("v_and_b32 v%d, 0x80008000, v%d" % (H + 1, H + 1))
        a("v_cmp_ne_u32 vcc, 0x80008000, v%d" % (H + 1))
        poll_exit(a, "H_POLL1_%d" % layer, None)
        for q in range(4):
            a("v_mfma_f32_16x16x32_bf16 %s, %s, %s, %s" % (vr(RD, 4), vr(SEL, 4), vr(PB + 4 * q, 4), "0" if q == 0 else vr(RD, 4)))
        a("v_mov_b32 v%d, %d" % (H + 1, layer + 1))
        for ctl in ("quad_perm:[1,0,3,2]", "quad_perm:[2,3,0,1]", "row_half_mirror", "row_mirror"):
            for r in range(4):
                a("v_add_f32_dpp v%d, v%d, v%d %s row_mask:0xf bank_mask:0xf" % (RD + r, RD + r, RD + r, ctl))
        for r in range(4):
            a("v_fma_f32 v%d, |v%d|, s36, v%d" % (RD + r, RD + r, 8 + ty))
        for r in range(4):
            a("v_rsq_f32 v%d, v%d" % (RD + r, RD + r))
        for r in range(4):
            a("v_mul_f32 v%d, s%d, v%d" % (RD + r, 34 + ty, RD + r))
        for r in range(4):
            a("v_or_b32 v%d, 0x80000000, v%d" % (RD + r, RD + r))
        a("s_mov_b64 exec, 0x00ff00ff")
        a("buffer_store_dwordx4 %s, v%d, s[8:11], s45 offen sc1" % (vr(RD, 4), VAS))
        a("s_mov_b64 exec, -1")
        a("ds_write_b32 v%d, v%d offset:%d" % (VZ, H + 1, LF_H1))
        a("s_add_u32 s45, s45, 0x10000")
        stamp(a, "hop1 done")
        stamp_val(a, "s27", "polls1")
    n_help = _nst[0]

    a.label("L_FINAL")
    _nst[0] = max(n_comp, n_help)
    DL, XL = 0, 8
    GAr, GAi, TW5, GB = 16, 24, 160, 48
    TR, TI, OP, XF = 64, 80, 96, 112
    T = 128
    a("v_lshlrev_b32 v%d, 6, v%d" % (T, VNU))
    a("v_lshl_add_u32 v%d, v%d, 5, v%d" % (T, VH, T))
    for u in range(2):
        a("buffer_load_dwordx4 %s, v%d, s[20:23], s26 offen offset:%d" % (vr(XL + 4 * u, 4), T, 16 * u))
    a("v_bfe_u32 v%d, v%d, 2, 1" % (T + 1, VNU))
    a("v_lshlrev_b32 v%d, 8, v%d" % (T + 1, T + 1))
    a("v_lshrrev_b32 v%d, 3, v%d" % (T + 2, VNU))
    a("v_lshl_add_u32 v%d, v%d, 6, v%d" % (T + 1, T + 2, T + 1))
    a("v_and_b32 v%d, 3, v%d" % (T + 2, VNU))
    a("v_lshl_add_u32 v%d, v%d, 4, v%d" % (T + 1, T + 2, T + 1))
    a("v_lshl_add_u32 v%d, v%d, 9, v%d" % (T + 1, VH, T + 1))
    for q in range(2):
        a("ds_read_b128 %s, v%d offset:%d" % (vr(GAr + 4 * q, 4), T + 1, L_FR + q * 1024))
        a("ds_read_b128 %s, v%d offset:%d" % (vr(GAi + 4 * q, 4), T + 1, L_FI + q * 1024))
    for q in range(4):
        a("ds_read_b128 %s, v%d offset:%d" % (vr(TW5 + 4 * q, 4), T + 1, L_TW + q * 1024))
        a("ds_read_b128 %s, v%d offset:%d" % (vr(GB + 4 * q, 4), V16, L_FR + q * 1024))
    srd(a, 44, 40, XBYTES)
    a("v_lshrrev_b32 v%d, 1, v%d" % (T + 2, VT))
    a("v_lshlrev_b32 v%d, 6, v%d" % (T + 2, T + 2))
    a("v_and_b32 v%d, 16, v%d" % (T + 3, V16))
    a("v_add_u32 v%d, v%d, v%d" % (T + 2, T + 2, T + 3))
    a("s_lshr_b32 s24, s2, 1")
    a("s_lshl_b32 s24, s24, 15")
    a("s_and_b32 s17, s2, 1")
    a("s_lshl_b32 s17, s17, 5")
    a("s_add_u32 s24, s24, s17")
    a("s_add_u32 s24, s24, 0x%x" % DBUF)
    a("s_add_u32 s17, s24, 16384")
    a("s_mov_b32 s18, 0xa8002800")
    a("v_cmp_eq_u32 vcc, 0, v%d" % VH)
    a("s_waitcnt lgkmcnt(0)")
    a("v_pk_mul_f16 v%d, v%d, s18" % (T + 3, GAr + 1))
    a("v_cndmask_b32 v%d, v%d, v%d, vcc" % (TW5, TW5, T + 3))
    lds_wait(a, "FD", 255, T + 3, LF_DS, 4, "s16", sleep=1)
    a("s_mov_b32 s27, 0")
    if P["D5"]:
        a("s_sleep %d" % P["D5"])
    a.label("F_POLL")
    a("buffer_load_dwordx4 %s, v%d, s[8:11], s24 offen sc1" % (vr(DL, 4), T + 2))
    a("buffer_load_dwordx4 %s, v%d, s[8:11], s17 offen sc1" % (vr(DL + 4, 4), T + 2))
    a("s_waitcnt vmcnt(2)")
    for q in range(8):
        a("v_lshlrev_b32 v%d, 16, v%d" % (XF + 2 * q, XL + q))
        a("v_and_b32 v%d, 0xffff0000, v%d" % (XF + 2 * q + 1, XL + q))
    a("s_waitcnt vmcnt(0)")
    and_or_tree(a, range(DL, DL + 8), T + 3, T + 4, True)
    a("v_and_b32 v%d, 1, v%d" % (T + 3, T + 3))
    a("v_cmp_eq_u32 vcc, 0, v%d" % (T + 3))
    poll_exit(a, "F_POLL", None)
    stamp(a, "D loaded")
    stamp_val(a, "s27", "pollsD")
    for it in range(2):
        for ih in range(2):
            a("ds_write2st64_b32 v%d, v%d, v%d offset0:%d offset1:%d" % (246, DL + 4 * it + 2 * ih, DL + 4 * it + 2 * ih + 1, 16 * ih + 4 * it, 16 * ih + 8 + 4 * it))
    a("s_waitcnt lgkmcnt(0)")
    a("s_barrier")
    for t in range(2):
        a("ds_read_b128 %s, v250 offset:%d" % (vr(DL + 4 * t, 4), t * 1024))
    for t in range(2):
        a("s_waitcnt lgkmcnt(%d)" % (1 - t))
        a("v_mfma_f32_32x32x16_f16 %s, %s, %s, %s" % (vr(TR, 16), vr(DL + 4 * t, 4), vr(GAr + 4 * t, 4), "0" if t == 0 else vr(TR, 16)))
        a("v_mfma_f32_32x32x16_f16 %s, %s, %s, %s" % (vr(TI, 16), vr(DL + 4 * t, 4), vr(GAi + 4 * t, 4), "0" if t == 0 else vr(TI, 16)))
    valu = []
    for t in range(4):
        for p in range(4):
            r = 4 * t + p
            valu.append("v_cvt_pk_f16_f32 v%d, v%d, v%d" % (TI + r, TR + r, TI + r))
        ops = [cmul_ops(OP + 4 * t + p, TI + 4 * t + p, TW5 + 4 * t + p) for p in range(4)]
        valu += [o[0] for o in ops] + [o[1] for o in ops]
    DO = 144
    mfs = [(12 * (t + 1) + 2, "v_mfma_f32_32x32x16_f16 %s, %s, %s, %s" % (vr(DO, 16), vr(OP + 4 * t, 4), vr(GB + 4 * t, 4), "0" if t == 0 else vr(DO, 16))) for t in range(4)]
    interleave(a, valu, mfs)
    for r in range(16):
        a("v_fmac_f32 v%d, s15, v%d" % (XF + r, DO + r))
    for q in range(8):
        a("v_cvt_pk_bf16_f32 v%d, v%d, v%d" % (OP + q, XF + 2 * q, XF + 2 * q + 1))
    for u in range(2):
        a("buffer_store_dwordx4 %s, v%d, s[44:47], s26 offen offset:%d" % (vr(OP + 4 * u, 4), T, 16 * u))
    stamp(a, "out issued")
    if STAMPS:
        a("s_waitcnt vmcnt(0)")
    stamp(a, "out done")
    stamp_dump(a, _nst[0], 180)
    a.label("L_END")
    a("s_endpgm")


def main(out):
    a = Asm()
    a.raw("; @launch grid=(256,1,1) block=(512,1,1) lds=%d" % LDS_BYTES)
    a.raw('.amdgcn_target "amdgcn-amd-amdhsa--gfx950"')
    a.raw(".text")
    gen(a)
    a.raw('.section .rodata,"a"')
    a.raw(".p2align 6")
    a.raw(""".amdhsa_kernel %s
  .amdhsa_next_free_vgpr 256
  .amdhsa_next_free_sgpr %d
  .amdhsa_accum_offset 256
  .amdhsa_group_segment_fixed_size 0
  .amdhsa_kernarg_size 72
  .amdhsa_user_sgpr_count 2
  .amdhsa_user_sgpr_kernarg_segment_ptr 1
  .amdhsa_system_sgpr_workgroup_id_x 1
.end_amdhsa_kernel""" % (KNAME, 100 if STAMPS else 64))
    open(out, "w").write(a.text())
    print("instructions:", a.count, "nop states:", a.nops, "lds", LDS_BYTES)


if __name__ == "__main__":
    for arg in sys.argv[2:]:
        if arg == "stamps":
            STAMPS = True
        elif "=" in arg:
            k, v = arg.split("=")
            P[k] = int(v)
    main(sys.argv[1])
```

```python
import sys
from asmlib import Asm, vr, sr, hexf, f2u

KNAME = "interleave_layers__spectral_gfnet__spectral_gfnet__prompt_kernel"
MB = 1 << 20
NBUF = 0
WBUF = 4 * MB
DBUF = 12 * MB
PART = 16 * MB
AVEC = 19 * MB
FN = AVEC + 3 * 65536
FW = FN + 65536
FB = FW + 16384
WS_BYTES = 268435456
XBYTES = 4194304
WBYTES = 2048 * 513 * 2
EPS = 1e-5
SPIN_MAX = 20000

P = dict(DN=10, DPN=3, DW=0, D1=14, D2=12, D5=12)
STAMPS = False
STAMP_BASE = 20 * MB

L_FR = 0
L_FI = 4096
L_CS = 8192
L_TW0 = 12288
L_TW = 16384
L_QT = 20480
L_MISC = 24576
BS = 1216
WST = 16 * BS
L_WSB = L_MISC + 256
L_WSA = L_WSB + WST
L_ROW = L_WSA + WST
CS = 3 * 4096 + 64
L_PQ = [L_ROW + 16512, L_WSA]
assert L_WSA + 2 * CS <= L_ROW + 16512
L_X = L_PQ[0] + 2 * CS
L_E = L_X + 16384
L_STASH = L_E + 8192
LDS_BYTES = L_STASH + 32768
assert LDS_BYTES <= 163840, LDS_BYTES
L_SIGT = L_TW0
LF_E = L_MISC + 0
LF_W = L_MISC + 4
LF_B = L_MISC + 8
LF_PQ = L_MISC + 12
LF_H1 = L_MISC + 16
LF_PS = L_MISC + 20
LF_BS = L_MISC + 24
LF_DS = L_MISC + 28
LF_X = L_MISC + 32
LF_EN = L_MISC + 48
L_INV = L_MISC + 64
L_EXP = L_MISC + 96

VT, VL, VNU, VH = 240, 241, 242, 243
V16 = 244

_nst = [0]


def stamp(a, name=""):
    if not STAMPS:
        return
    n = _nst[0]
    _nst[0] += 1
    a("s_memrealtime s[48:49]")
    a("s_waitcnt lgkmcnt(0)")
    a("s_mov_b32 s%d, s48 ; stamp %d %s" % (50 + n, n, name))


def stamp_val(a, sreg, name=""):
    if not STAMPS:
        return
    n = _nst[0]
    _nst[0] += 1
    a("s_mov_b32 s%d, %s ; stampval %d %s" % (50 + n, sreg, n, name))


def stamp_dump(a, n, vtmp):
    if not STAMPS:
        return
    for i in range(n):
        a("v_writelane_b32 v%d, s%d, %d" % (vtmp, 50 + i, i))
    a("v_lshlrev_b32 v%d, 2, v%d" % (vtmp + 1, VL))
    a("s_lshl_b32 s48, s2, 3")
    a("s_add_u32 s48, s48, s3")
    a("s_lshl_b32 s48, s48, 8")
    a("s_add_u32 s48, s48, 0x%x" % STAMP_BASE)
    a("buffer_store_dword v%d, v%d, s[8:11], s48 offen" % (vtmp, vtmp + 1))


def srd(a, sbase, sptr, nbytes):
    a("s_mov_b32 s%d, s%d" % (sbase, sptr))
    a("s_and_b32 s%d, s%d, 0xffff" % (sbase + 1, sptr + 1))
    a("s_mov_b32 s%d, 0x%x" % (sbase + 2, nbytes))
    a("s_mov_b32 s%d, 0x00020000" % (sbase + 3))


def cmul_ops(dst, x, w):
    return ["v_pk_mul_f16 v%d, v%d, v%d op_sel:[0,0] op_sel_hi:[1,0]" % (dst, x, w),
            "v_pk_fma_f16 v%d, v%d, v%d, v%d op_sel:[1,1,0] op_sel_hi:[0,1,1] neg_lo:[1,0,0]" % (dst, x, w, dst)]


def wave_allreduce_ops(op, r, t):
    o = []
    for ctl in ("quad_perm:[1,0,3,2]", "quad_perm:[2,3,0,1]", "row_half_mirror", "row_mirror"):
        o.append("%s_dpp v%d, v%d, v%d %s row_mask:0xf bank_mask:0xf" % (op, r, r, r, ctl))
    for sw in ("v_permlane16_swap_b32", "v_permlane32_swap_b32"):
        o.append("v_mov_b32 v%d, v%d" % (t, r))
        o.append("%s v%d, v%d" % (sw, r, t))
        o.append("%s v%d, v%d, v%d" % (op, r, r, t))
    return o


def zipper(a, main, filler, ratio=1):
    fi = 0
    for m in main:
        a(m)
        for _ in range(ratio):
            if fi < len(filler):
                a(filler[fi])
                fi += 1
    return filler[fi:]


def interleave(a, valu, mfmas):
    mi = 0
    for i, v in enumerate(valu):
        while mi < len(mfmas) and mfmas[mi][0] <= i:
            a(mfmas[mi][1])
            mi += 1
        a(v)
    while mi < len(mfmas):
        a(mfmas[mi][1])
        mi += 1


def and_or_tree(a, regs, t0, t1, use_and):
    bop = "0x80" if use_and else "0xfe"
    op2 = "v_and_b32" if use_and else "v_or_b32"
    regs = list(regs)
    if len(regs) == 4:
        a("v_bitop3_b32 v%d, v%d, v%d, v%d bitop3:%s" % (t0, regs[0], regs[1], regs[2], bop))
        a("%s v%d, v%d, v%d" % (op2, t0, t0, regs[3]))
        return
    a("v_bitop3_b32 v%d, v%d, v%d, v%d bitop3:%s" % (t0, regs[0], regs[1], regs[2], bop))
    a("v_bitop3_b32 v%d, v%d, v%d, v%d bitop3:%s" % (t1, regs[3], regs[4], regs[5], bop))
    rest = regs[6:]
    tt = [t0, t1]
    k = 0
    while len(rest) >= 2:
        a("v_bitop3_b32 v%d, v%d, v%d, v%d bitop3:%s" % (tt[k], tt[k], rest[0], rest[1], bop))
        rest = rest[2:]
        k ^= 1
    assert not rest
    a("%s v%d, v%d, v%d" % (op2, t0, t0, t1))


def lds_wait(a, tag, vaddr, vtmp, off, cmp_ge_val, sres, sleep=1):
    a("s_mov_b32 s27, 0")
    a.label("LW_%s" % tag)
    a("ds_read_b32 v%d, v%d offset:%d" % (vtmp, vaddr, off))
    a("s_add_u32 s27, s27, 1")
    a("s_waitcnt lgkmcnt(0)")
    a("v_readfirstlane_b32 %s, v%d" % (sres, vtmp))
    a("s_cmp_gt_u32 s27, 0x%x" % (SPIN_MAX * 40))
    a.branch("s_cbranch_scc1 LWX_%s" % tag)
    a("s_cmp_ge_u32 %s, %d" % (sres, cmp_ge_val))
    a.branch("s_cbranch_scc1 LWX_%s" % tag)
    if sleep:
        a("s_sleep %d" % sleep)
    a.branch("s_branch LW_%s" % tag)
    a.label("LWX_%s" % tag)


def w_unit(a, W, ty, PF, PK, T, vst, filler=None):
    MX = T + 4
    ops = []
    first = True
    for c in range(2):
        b1, b2 = W + 8 * c, W + 8 * c + 4
        for b in (b1, b2):
            ops.append("v_alignbit_b32 v%d, v%d, v%d, s14" % (b, b + 1, b))
            ops.append("v_alignbit_b32 v%d, v%d, v%d, s14" % (b + 1, b + 2, b + 1))
        for d in range(2):
            ops.append("v_lshlrev_b32 v%d, 16, v%d" % (T, b1 + d))
            ops.append("v_and_b32 v%d, 0xffff0000, v%d" % (T + 1, b1 + d))
            ops.append("v_lshlrev_b32 v%d, 16, v%d" % (T + 2, b2 + d))
            ops.append("v_and_b32 v%d, 0xffff0000, v%d" % (T + 3, b2 + d))
            for u in range(2):
                base = PF + (2 * d + u) * 4
                ops.append("v_add_f32 v%d, v%d, v%d" % (base + c, T + u, T + 2 + u))
                ops.append("v_sub_f32 v%d, v%d, v%d" % (base + 2 + c, T + u, T + 2 + u))
                if first:
                    ops.append("v_max_f32 v%d, |v%d|, |v%d|" % (MX, base + c, base + 2 + c))
                    first = False
                else:
                    ops.append("v_max3_f32 v%d, |v%d|, |v%d|, v%d" % (MX, base + c, base + 2 + c, MX))
    ops += wave_allreduce_ops("v_max_f32", MX, T + 5)
    ops.append("v_lshrrev_b32 v%d, 23, v%d" % (MX, MX))
    ops.append("v_add_u32 v%d, 2, v%d" % (MX, MX))
    ops.append("v_max_u32 v%d, 0x61, v%d" % (MX, MX))
    ops.append("v_min_u32 v%d, 0xdc, v%d" % (MX, MX))
    ops.append("v_sub_u32 v%d, 0xfe, v%d" % (T + 5, MX))
    ops.append("v_lshlrev_b32 v%d, 23, v%d" % (T + 5, T + 5))
    ops.append("ds_write_b32 v%d, v%d offset:%d" % (T + 6, MX, L_EXP + 32 * ty))
    for e4 in range(4):
        base = PF + e4 * 4
        o = PK + 2 * e4
        ops.append("v_fma_mixlo_f16 v%d, v%d, v%d, 0" % (o, base, T + 5))
        ops.append("v_fma_mixlo_f16 v%d, v%d, v%d, 0" % (o + 1, base + 2, T + 5))
        ops.append("v_fma_mixhi_f16 v%d, v%d, v%d, 0" % (o, base + 1, T + 5))
        ops.append("v_fma_mixhi_f16 v%d, v%d, v%d, 0" % (o + 1, base + 3, T + 5))
    for e4 in range(4):
        ops.append("ds_write_b64 v%d, %s offset:%d" % (vst, vr(PK + 2 * e4, 2), (L_WSA, L_WSB)[ty] + e4 * 32))
    return ops


def poll_exit(a, tag, again_branch, sleep=0):
    a("s_add_u32 s27, s27, 1")
    a("s_cmp_gt_u32 s27, %d" % SPIN_MAX)
    a.branch("s_cbranch_scc1 %sX" % tag)
    if sleep:
        a.branch("s_cbranch_vccz %sX" % tag)
        a("s_sleep %d" % sleep)
        a.branch("s_branch %s" % tag)
    else:
        a.branch("s_cbranch_vccnz %s" % tag)
    a.label("%sX" % tag)


def lds_spec(a, tag, vz, vtmp, flag_off, ge, reads, vflagaddr=None):
    a("s_mov_b32 s27, 0")
    a.label("LS_%s" % tag)
    a("ds_read_b32 v%d, v%d offset:%d" % (vtmp, vz if vflagaddr is None else vflagaddr, flag_off))
    for r in reads:
        a(r)
    a("s_add_u32 s27, s27, 1")
    a("s_waitcnt lgkmcnt(%d)" % min(len(reads), 15))
    a("v_readfirstlane_b32 s16, v%d" % vtmp)
    a("s_cmp_gt_u32 s27, 0x%x" % (SPIN_MAX * 40))
    a.branch("s_cbranch_scc1 LSX_%s" % tag)
    a("s_cmp_ge_u32 s16, %d" % ge)
    a.branch("s_cbranch_scc0 LS_%s" % tag)
    a.label("LSX_%s" % tag)


def gen(a):
    a.raw(".globl %s" % KNAME)
    a.raw(".p2align 8")
    a.raw(".type %s,@function" % KNAME)
    a.raw("%s:" % KNAME)
    a("s_cmp_ge_u32 s2, 256")
    a.branch("s_cbranch_scc1 L_END")
    a("s_load_dwordx16 s[28:43], s[0:1], 0")
    a("s_load_dwordx2 s[4:5], s[0:1], 64")
    a("s_getpc_b64 s[6:7]")
    a.raw("L_PC:")
    a("v_lshrrev_b32 v3, 6, v0")
    a("s_lshr_b32 s16, s2, 3")
    a("s_lshl_b32 s16, s16, 10")
    a("v_lshl_add_u32 v1, v3, 7, s16")
    a("v_cmp_gt_u32 vcc, L_END-L_PC, v1")
    a("v_readfirstlane_b32 s3, v3")
    a("v_cndmask_b32 v1, 0, v1, vcc")
    a("global_load_dword v2, v1, s[6:7]")
    stamp(a, "start")
    a("v_mov_b32 v%d, v0" % VT)
    a("v_and_b32 v%d, 63, v0" % VL)
    a("v_and_b32 v%d, 31, v0" % VNU)
    a("v_bfe_u32 v%d, v0, 5, 1" % VH)
    a("v_lshlrev_b32 v%d, 4, v%d" % (V16, VL))
    a("s_and_b32 s12, s3, 3")
    a("s_lshr_b32 s13, s3, 2")
    a("s_and_b32 s17, s2, 31")
    a("s_lshr_b32 s18, s2, 5")
    a("s_lshl_b32 s18, s18, 7")
    a("s_add_u32 s17, s17, s18")
    a("s_lshl_b32 s18, s12, 5")
    a("s_add_u32 s17, s17, s18")
    a("s_mul_i32 s17, s17, 1026")
    a("s_lshl_b32 s18, s13, 9")
    a("s_add_u32 s17, s17, s18")
    a("s_add_u32 s17, s17, 2")
    a("s_and_b32 s14, s17, 2")
    a("s_lshl_b32 s14, s14, 3")
    a("s_and_b32 s17, s17, 0xfffffffc")
    a("s_add_u32 s18, s17, %d" % (1024 * 1026))
    a("s_bfe_u32 s16, s2, 0x30004")
    a("s_lshl_b32 s16, s16, 8")
    a("s_and_b32 s19, s2, 15")
    a("s_lshl_b32 s19, s19, 2")
    a("s_add_u32 s16, s16, s19")
    a("s_lshr_b32 s19, s2, 7")
    a("s_add_u32 s16, s16, s19")
    a("s_lshl_b32 s19, s12, 6")
    a("s_add_u32 s16, s16, s19")
    a("s_lshl_b32 s19, s13, 1")
    a("s_add_u32 s16, s16, s19")
    a("s_lshl_b32 s26, s16, 11")
    a("v_lshlrev_b32 v4, 6, v%d" % VNU)
    a("v_lshl_add_u32 v4, v%d, 4, v4" % VH)
    a("v_lshlrev_b32 v5, 3, v%d" % VL)
    ZR = 144
    for q in range(4):
        a("v_mov_b32 v%d, 0" % (ZR + q))
    XL, WA, WBR = 8, 16, 184
    a("s_waitcnt lgkmcnt(0)")
    stamp(a, "kernarg")
    srd(a, 8, 4, WS_BYTES)
    a("s_cmp_lg_u32 s3, 7")
    a.branch("s_cbranch_scc1 L_NOCLR")
    a("v_lshlrev_b32 v6, 11, v%d" % VL)
    a("s_lshl_b32 s19, s2, 3")
    a("s_add_u32 s19, s19, 0x%x" % FW)
    a("v_lshrrev_b32 v7, 1, v%d" % VL)
    a("v_lshlrev_b32 v7, 13, v7")
    a("v_and_b32 v1, 16, v%d" % V16)
    a("v_add_u32 v7, v7, v1")
    a("s_lshl_b32 s24, s2, 5")
    a("s_add_u32 s24, s24, 0x%x" % FN)
    a("s_mov_b64 exec, 0xffff")
    a("buffer_store_dwordx2 %s, v6, s[8:11], s19 offen sc1" % vr(ZR, 2))
    a("buffer_store_dwordx4 %s, v7, s[8:11], s24 offen sc1" % vr(ZR, 4))
    a("s_mov_b64 exec, 0xff")
    a("ds_write_b64 v5, %s offset:%d" % (vr(ZR, 2), L_MISC))
    a("s_mov_b64 exec, -1")
    a.label("L_NOCLR")
    for n, sp in enumerate((30, 32)):
        srd(a, 44, sp, WBYTES)
        a("buffer_load_dwordx3 %s, v5, s[44:47], s17 offen" % vr(WA + 8 * n, 3))
        a("buffer_load_dwordx3 %s, v5, s[44:47], s18 offen" % vr(WA + 8 * n + 4, 3))
    srd(a, 20, 28, XBYTES)
    a("buffer_load_dwordx4 %s, v4, s[20:23], s26 offen" % vr(XL, 4))
    a("buffer_load_dwordx4 %s, v4, s[20:23], s26 offen offset:32" % vr(XL + 4, 4))
    stamp(a, "ld issued")
    T = 88
    a("s_lshr_b32 s19, s3, 1")
    a("s_lshl_b32 s24, s19, 3")
    a("s_and_b32 s25, s3, 1")
    a("s_lshl_b32 s25, s25, 1")
    a("s_add_u32 s24, s24, s25")
    a("v_lshl_add_u32 v%d, v%d, 2, s24" % (T + 4, VH))
    a("v_cvt_f32_u32 v%d, v%d" % (T + 4, T + 4))
    a("v_add_f32 v%d, 1.0, v%d" % (T + 5, T + 4))
    a("v_cvt_f32_u32 v%d, v%d" % (T + 6, VNU))
    a("v_cmp_eq_u32 vcc, 0, v%d" % VNU)
    a("v_mov_b32 v%d, 0x42000000" % (T + 7))
    a("v_mul_f32 v%d, %s, v%d" % (T + 8, hexf(1.0 / 32), T + 6))
    a("v_cndmask_b32 v%d, v%d, v%d, vcc" % (T + 7, T + 6, T + 7))
    MEAN = 175
    a("v_mov_b32 v%d, %s" % (MEAN, hexf(1.0 / 32)))
    a("v_cndmask_b32 v%d, 0, v%d, vcc" % (MEAN, MEAN))
    a("v_mul_f32 v%d, %s, v%d" % (T + 7, hexf(1.0 / 1024), T + 7))
    a("v_mul_f32 v%d, %s, v%d" % (T + 9, hexf(1.0 / 1024), T + 6))
    a("v_mul_f32 v%d, %s, v%d" % (T + 10, hexf(1.0 / 2048), T + 6))
    A0 = T + 12
    for u in range(2):
        a("v_mul_f32 v%d, v%d, v%d" % (A0 + u, T + 4 + u, T + 8))
        a("v_mul_f32 v%d, v%d, v%d" % (A0 + 2 + u, T + 4 + u, T + 7))
        a("v_mul_f32 v%d, v%d, v%d" % (A0 + 4 + u, T + 4 + u, T + 9))
        a("v_fmamk_f32 v%d, v%d, %s, v%d" % (A0 + 6 + u, T + 4 + u, hexf(1.0 / 64), T + 10))
    for u in range(2):
        a("v_fract_f32 v%d, v%d" % (A0 + u, A0 + u))
    CO, SI_ = A0 + 8, A0 + 16
    for k in range(8):
        a("v_cos_f32 v%d, v%d" % (CO + k, A0 + k))
        a("v_sin_f32 v%d, v%d" % (SI_ + k, A0 + k))
    a("s_lshl_b32 s19, s19, 10")
    a("s_lshl_b32 s25, s25, 2")
    a("s_add_u32 s19, s19, s25")
    a("v_add_u32 v6, s19, v%d" % V16)
    a("s_lshl_b32 s19, s13, 10")
    a("s_lshl_b32 s25, s12, 2")
    a("s_add_u32 s19, s19, s25")
    a("v_add_u32 v7, s19, v%d" % V16)
    a("s_mov_b32 s19, %s" % hexf(1.0 / 32))
    O = A0 + 24
    for u in range(2):
        a("v_cvt_pk_f16_f32 v%d, v%d, v%d" % (O + u, CO + u, SI_ + u))
        a("v_cvt_pk_f16_f32 v%d, -v%d, v%d" % (O + 2 + u, SI_ + u, CO + u))
        a("v_fma_mixlo_f16 v%d, v%d, s19, 0" % (O + 4 + u, CO + 2 + u))
        a("v_fma_mixlo_f16 v%d, v%d, s19, 0" % (O + 6 + u, CO + 4 + u))
        a("v_fma_mixhi_f16 v%d, -v%d, s19, 0" % (O + 4 + u, SI_ + 2 + u))
        a("v_fma_mixhi_f16 v%d, -v%d, s19, 0" % (O + 6 + u, SI_ + 4 + u))
        a("v_cvt_pk_f16_f32 v%d, v%d, -v%d" % (O + 8 + u, CO + 6 + u, SI_ + 6 + u))
    a("v_cvt_pk_bf16_f32 v%d, v%d, v%d" % (O + 10, CO, CO + 1))
    a("v_cvt_pk_bf16_f32 v%d, -v%d, -v%d" % (O + 11, SI_, SI_ + 1))
    for k, tb in enumerate((L_FR, L_FI, L_TW0, L_TW, L_QT)):
        a("ds_write_b64 v6, %s offset:%d" % (vr(O + 2 * k, 2), tb))
    a("ds_write_b32 v7, v%d offset:%d" % (O + 10, L_CS))
    a("ds_write_b32 v7, v%d offset:%d" % (O + 11, L_CS + 2048))
    ID, C1, S1, TW0, M2 = 32, 40, 48, 56, 72
    a("v_lshrrev_b32 v%d, 1, v%d" % (T + 4, VNU))
    a("v_lshlrev_b32 v%d, 2, v%d" % (T + 5, VH))
    a("v_sub_u32 v%d, v%d, v%d" % (T + 4, T + 4, T + 5))
    a("v_and_b32 v%d, 1, v%d" % (T + 5, VNU))
    a("v_lshlrev_b32 v%d, 4, v%d" % (T + 6, T + 5))
    a("v_mov_b32 v%d, 0x3f80" % (T + 7))
    a("v_lshlrev_b32 v%d, v%d, v%d" % (T + 7, T + 6, T + 7))
    for t in range(2):
        for q in range(4):
            a("v_cmp_eq_u32 vcc, %d, v%d" % (8 * t + q, T + 4))
            a("v_cndmask_b32 v%d, 0, v%d, vcc" % (ID + 4 * t + q, T + 7))
    a("v_lshlrev_b32 v7, 12, v%d" % (T + 5))
    a("v_bfe_u32 v%d, v%d, 4, 1" % (T + 4, VNU))
    a("v_lshl_add_u32 v7, v%d, 7, v7" % (T + 4))
    a("v_bfe_u32 v%d, v%d, 2, 1" % (T + 4, VNU))
    a("v_lshl_add_u32 v7, v%d, 6, v7" % (T + 4))
    a("v_bfe_u32 v%d, v%d, 3, 1" % (T + 4, VNU))
    a("v_lshl_add_u32 v7, v%d, 5, v7" % (T + 4))
    a("v_bfe_u32 v%d, v%d, 1, 1" % (T + 4, VNU))
    a("v_lshl_add_u32 v7, v%d, 4, v7" % (T + 4))
    a("v_lshl_add_u32 v7, v%d, 9, v7" % VH)
    VST = 245
    a("s_lshl_b32 s19, s13, 3")
    a("s_add_u32 s19, s19, s12")
    a("v_lshl_add_u32 v%d, v%d, 2, s19" % (VST, VH))
    a("v_mul_u32_u24 v%d, %d, v%d" % (VST, BS, VST))
    a("v_and_b32 v%d, 7, v%d" % (T + 4, VL))
    a("v_mul_u32_u24 v%d, 144, v%d" % (T + 4, T + 4))
    a("v_add_u32 v%d, v%d, v%d" % (VST, VST, T + 4))
    a("v_bfe_u32 v%d, v%d, 3, 2" % (T + 4, VL))
    a("v_lshl_add_u32 v%d, v%d, 3, v%d" % (VST, T + 4, VST))
    VRR, VNS, VWR, VWS, VRW = 246, 247, 248, 249, 250
    a("v_and_b32 v%d, 1, v0" % VRR)
    a("v_mul_u32_u24 v%d, %d, v%d" % (VRR, 8192 + 64, VRR))
    a("v_lshrrev_b32 v%d, 1, v0" % (T + 4))
    a("v_lshl_add_u32 v%d, v%d, 2, v%d" % (VRR, T + 4, VRR))
    a("v_add_u32 v%d, %d, v%d" % (VRR, L_ROW, VRR))
    a("v_lshrrev_b32 v%d, 2, v0" % (T + 4))
    a("v_and_b32 v%d, 48, v%d" % (T + 5, V16))
    a("v_lshl_add_u32 v%d, v%d, 14, v%d" % (VNS, T + 4, T + 5))
    a("v_lshl_add_u32 v%d, v%d, 15, v%d" % (VWS, T + 4, T + 5))
    a("v_lshrrev_b32 v%d, 3, v0" % (T + 4))
    a("v_add_u32 v%d, 31, v%d" % (T + 4, T + 4))
    a("v_and_b32 v%d, 31, v%d" % (T + 4, T + 4))
    a("v_lshrrev_b32 v%d, 2, v%d" % (T + 5, T + 4))
    a("v_mul_u32_u24 v%d, 144, v%d" % (VWR, T + 5))
    a("v_and_b32 v%d, 3, v%d" % (T + 4, T + 4))
    a("v_lshl_add_u32 v%d, v%d, 5, v%d" % (VWR, T + 4, VWR))
    a("v_bfe_u32 v%d, v0, 1, 2" % (T + 4))
    a("v_lshl_add_u32 v%d, v%d, 3, v%d" % (VWR, T + 4, VWR))
    a("v_and_b32 v%d, 1, v0" % (T + 4))
    a("v_lshrrev_b32 v%d, 8, v0" % (T + 5))
    a("v_lshl_add_u32 v%d, v%d, 1, v%d" % (T + 4, T + 5, T + 4))
    a("v_mul_u32_u24 v%d, %d, v%d" % (T + 4, 2 * BS, T + 4))
    a("v_add_u32 v%d, v%d, v%d" % (VWR, VWR, T + 4))
    WT = 200
    a("s_lshl_b32 s19, s3, 2")
    a("v_mov_b32 v%d, s19" % (WT + 6))
    a("s_lshl_b32 s19, s3, 11")
    a("s_lshl_b32 s24, s13, 6")
    a("s_add_u32 s19, s19, s24")
    a("s_add_u32 s19, s19, %d" % L_ROW)
    a("v_add_u32 v%d, s19, v%d" % (VRW, V16))
    a("s_cmp_lg_u32 s3, 7")
    a.branch("s_cbranch_scc1 L_NOARR")
    srd(a, 44, 42, 256)
    a("s_and_b32 s25, s2, 31")
    a("s_lshl_b32 s25, s25, 2")
    a("s_add_u32 s25, s25, 128")
    a("v_mov_b32 v%d, 1" % (T + 8))
    a("s_waitcnt vmcnt(6)")
    a("s_mov_b64 exec, 1")
    a("buffer_atomic_add v%d, v%d, s[44:47], s25 offen sc1" % (T + 8, ZR))
    a("s_mov_b64 exec, -1")
    a.label("L_NOARR")
    stamp(a, "tables")
    a("s_waitcnt vmcnt(2)")
    stamp(a, "WA loaded")
    for o in w_unit(a, WA, 0, 208, 224, WT, VST):
        a(o)
    a("s_lshl_b32 s19, s2, 6")
    a("s_add_u32 s24, s19, 0x%x" % WBUF)
    a("s_waitcnt lgkmcnt(0)")
    a("s_barrier")
    R0 = 104
    for it in range(2):
        off = L_WSA + it * 8 * BS
        a("ds_read_b64 %s, v%d offset:%d" % (vr(R0 + 4 * it, 2), VWR, off))
        a("ds_read_b64 %s, v%d offset:%d" % (vr(R0 + 4 * it + 2, 2), VWR, off + BS))
    for q in range(4):
        a("ds_read_b128 %s, v%d offset:%d" % (vr(C1 + 4 * q, 4), V16, L_CS + q * 1024))
    for it in range(2):
        a("s_waitcnt lgkmcnt(%d)" % (6 - 2 * it))
        a("s_add_u32 s25, s24, 0x%x" % (it * 128 * 32768))
        a("buffer_store_dwordx4 %s, v%d, s[8:11], s25 offen sc1" % (vr(R0 + 4 * it, 4), VWS))
    for q in range(4):
        a("ds_read_b128 %s, v%d offset:%d" % (vr(TW0 + 4 * q, 4), V16, L_TW0 + q * 1024))
    for q in range(4):
        a("ds_read_b128 %s, v7 offset:%d" % (vr(M2 + 4 * q, 4), L_FR + q * 1024))
    for n, sp in enumerate((36, 38)):
        srd(a, 44, sp, WBYTES)
        a("buffer_load_dwordx3 %s, v5, s[44:47], s17 offen" % vr(WBR + 8 * n, 3))
        a("buffer_load_dwordx3 %s, v5, s[44:47], s18 offen" % vr(WBR + 8 * n + 4, 3))
    stamp(a, "PQA issued")
    D0, XA, TR, TI, OP = 88, 16, 112, 128, 152
    T = 168
    a("s_waitcnt vmcnt(6)")
    stamp(a, "x loaded")
    a("v_mfma_f32_32x32x16_bf16 %s, %s, %s, 0" % (vr(D0, 16), vr(XL, 4), vr(ID, 4)))
    a("v_mfma_f32_32x32x16_bf16 %s, %s, %s, %s" % (vr(D0, 16), vr(XL + 4, 4), vr(ID + 4, 4), vr(D0, 16)))
    for q in range(8):
        a("v_cvt_pk_bf16_f32 v%d, v%d, v%d" % (XA + q, D0 + 2 * q, D0 + 2 * q + 1))
    a("s_waitcnt lgkmcnt(0)")
    for t in range(2):
        a("v_mfma_f32_32x32x16_bf16 %s, %s, %s, %s" % (vr(TR, 16), vr(XA + 4 * t, 4), vr(C1 + 4 * t, 4), "0" if t == 0 else vr(TR, 16)))
    for t in range(2):
        a("v_mfma_f32_32x32x16_bf16 %s, %s, %s, %s" % (vr(TI, 16), vr(XA + 4 * t, 4), vr(S1 + 4 * t, 4), "0" if t == 0 else vr(TI, 16)))
    SM, SX, E2 = T, T + 1, T + 2
    a("v_add_f32 v%d, v%d, v%d" % (SM, TR, TR + 1))
    a("v_add_f32 v%d, v%d, v%d" % (SX, TR + 2, TR + 3))
    for r in range(4, 16, 2):
        a("v_add_f32 v%d, v%d, v%d" % (SM, SM, TR + r))
        a("v_add_f32 v%d, v%d, v%d" % (SX, SX, TR + r + 1))
    a("v_add_f32 v%d, v%d, v%d" % (SM, SM, SX))
    a("v_mov_b32 v%d, v%d" % (SX, SM))
    en_i = ["v_mul_f32 v%d, v%d, v%d" % (E2, TI, TI)] + ["v_fmac_f32 v%d, v%d, v%d" % (E2, TI + r, TI + r) for r in range(1, 16)]
    for o in en_i[:2]:
        a(o)
    a("v_permlane32_swap_b32 v%d, v%d" % (SM, SX))
    for o in en_i[2:4]:
        a(o)
    a("v_add_f32 v%d, v%d, v%d" % (SM, SM, SX))
    a("v_mul_f32 v%d, v%d, v%d" % (SM, SM, MEAN))
    for o in en_i[4:]:
        a(o)
    for r in range(16):
        a("v_sub_f32 v%d, v%d, v%d" % (TR + r, TR + r, SM))
    for r in range(16):
        if r % 2:
            a("v_fmac_f32 v%d, v%d, v%d" % (E2, TR + r, TR + r))
        elif r == 0:
            a("v_mul_f32 v%d, v%d, v%d" % (SX, TR, TR))
        else:
            a("v_fmac_f32 v%d, v%d, v%d" % (SX, TR + r, TR + r))
    a("v_add_f32 v%d, v%d, v%d" % (E2, E2, SX))
    a("v_mov_b32 v%d, %s" % (T + 3, hexf(EPS)))
    for o in wave_allreduce_ops("v_add_f32", E2, SX):
        a(o)
    a("v_fmamk_f32 v%d, v%d, %s, v%d" % (E2, E2, hexf(2.0 ** -15), T + 3))
    AS = T + 4
    a("v_rsq_f32 v%d, v%d" % (AS, E2))
    valu = []
    for t in range(4):
        for p in range(4):
            r = 4 * t + p
            valu.append("v_fma_mixlo_f16 v%d, v%d, v%d, 0" % (TR + r, TR + r, AS))
        for p in range(4):
            r = 4 * t + p
            valu.append("v_fma_mixhi_f16 v%d, v%d, v%d, 0" % (TR + r, TI + r, AS))
        ops = [cmul_ops(OP + 4 * t + p, TR + 4 * t + p, TW0 + 4 * t + p) for p in range(4)]
        valu += [o[0] for o in ops] + [o[1] for o in ops]
    mf = [(16 * (t + 1) + 2, "v_mfma_f32_32x32x16_f16 %s, %s, %s, %s" % (vr(D0, 16), vr(M2 + 4 * t, 4), vr(OP + 4 * t, 4), "0" if t == 0 else vr(D0, 16))) for t in range(4)]
    interleave(a, valu, mf)
    a("v_mul_f32 v%d, v%d, v%d" % (E2, E2, AS))
    a("v_mul_f32 v%d, %s, v%d" % (E2, hexf(32.0), E2))
    a("ds_write_b32 v%d, v%d offset:%d" % (WT + 6, E2, L_INV))
    a("ds_read_b128 %s, v%d offset:%d" % (vr(R0 + 16, 4), ZR, L_EXP))
    a("ds_read_b128 %s, v%d offset:%d" % (vr(R0 + 20, 4), ZR, L_EXP + 16))
    for q in range(8):
        a("v_cvt_pk_f16_f32 v%d, v%d, v%d" % (XA + q, D0 + 2 * q, D0 + 2 * q + 1))
    for t in range(2):
        a("ds_write_b128 v%d, %s offset:%d" % (VRW, vr(XA + 4 * t, 4), t * 1024))

    def sig_pack(R, D):
        for hf in range(2):
            b = R + 4 * hf
            a("v_lshl_or_b32 v%d, v%d, 8, v%d" % (D + hf, b + 1, b))
            a("v_lshl_or_b32 v%d, v%d, 16, v%d" % (D + hf, b + 2, D + hf))
            a("v_lshl_or_b32 v%d, v%d, 24, v%d" % (D + hf, b + 3, D + hf))

    a("s_waitcnt lgkmcnt(2)")
    sig_pack(R0 + 16, R0 + 24)
    a("v_lshlrev_b32 v6, 11, v%d" % VL)
    a("s_lshl_b32 s15, s2, 3")
    a("s_add_u32 s15, s15, 0x%x" % FW)
    a("s_waitcnt vmcnt(4) lgkmcnt(0)")
    stamp(a, "row done")
    a("s_barrier")
    for it in range(2):
        for ih in range(2):
            a("ds_read2st64_b32 %s, v%d offset0:%d offset1:%d" % (vr(R0 + 4 * it + 2 * ih, 2), VRR, 16 * ih + 4 * it, 16 * ih + 8 + 4 * it))
    a("s_cmp_lg_u32 s3, 7")
    a.branch("s_cbranch_scc1 L_NOFW")
    a("s_mov_b64 exec, 0xff")
    a("buffer_store_dwordx2 %s, v6, s[8:11], s15 offen sc1" % vr(R0 + 24, 2))
    a("s_mov_b64 exec, -1")
    a.label("L_NOFW")
    for it in range(2):
        a("s_waitcnt lgkmcnt(%d)" % (2 - 2 * it))
        a("s_add_u32 s25, s19, 0x%x" % (it * 128 * 16384))
        a("buffer_store_dwordx4 %s, v%d, s[8:11], s25 offen sc1" % (vr(R0 + 4 * it, 4), VNS))
    a("v_and_b32 v1, 255, v0")
    a("v_lshlrev_b32 v1, 4, v1")
    a("s_lshl_b32 s25, s13, 20")
    a("s_lshl_b32 s16, s2, 12")
    a("s_add_u32 s25, s25, s16")
    a("s_add_u32 s25, s25, 0x%x" % PART)
    a("buffer_store_dwordx4 %s, v1, s[8:11], s25 offen sc1" % vr(ZR, 4))
    a("s_cmp_lg_u32 s3, 6")
    a.branch("s_cbranch_scc1 L_NOAV")
    a("v_lshrrev_b32 v1, 4, v%d" % VL)
    a("v_lshlrev_b32 v1, 16, v1")
    a("v_and_b32 v3, 0xf0, v%d" % V16)
    a("v_add_u32 v1, v1, v3")
    a("s_lshl_b32 s25, s2, 8")
    a("s_add_u32 s25, s25, 0x%x" % AVEC)
    a("s_mov_b32 exec_hi, 0xffff")
    a("buffer_store_dwordx4 %s, v1, s[8:11], s25 offen sc1" % vr(ZR, 4))
    a("s_mov_b64 exec, -1")
    a.label("L_NOAV")
    stamp(a, "N issued")
    a("s_waitcnt vmcnt(4)")
    a("s_cmp_ge_u32 s3, 6")
    a.branch("s_cbranch_scc1 L_WBOK")
    a("s_waitcnt vmcnt(3)")
    a.label("L_WBOK")
    for o in w_unit(a, WBR, 1, 208, 224, WT, VST):
        a(o)
    a("v_and_b32 v1, 16, v%d" % V16)
    a("ds_read_b128 %s, v1 offset:%d" % (vr(R0 + 16, 4), L_INV))
    a("v_lshrrev_b32 v7, 1, v%d" % VL)
    a("v_lshl_add_u32 v7, v7, 13, v1")
    a("s_lshl_b32 s25, s2, 5")
    a("s_add_u32 s25, s25, 0x%x" % FN)
    a("s_waitcnt vmcnt(0) lgkmcnt(0)")
    stamp(a, "N acked")
    a("s_barrier")
    a("s_cmp_lg_u32 s3, 7")
    a.branch("s_cbranch_scc1 L_NOFN")
    a("s_mov_b64 exec, 0xffff")
    a("buffer_store_dwordx4 %s, v7, s[8:11], s25 offen sc1" % vr(R0 + 16, 4))
    a("s_mov_b64 exec, -1")
    a.label("L_NOFN")
    a("s_cmp_ge_u32 s3, 4")
    a.branch("s_cbranch_scc1 L_HELPER")
    n_common = _nst[0]

    SR, SI = 0, 16
    DAr, DAi, DBr, DBi = 32, 48, 64, 80
    OP, OQ = 96, 112
    TW, FR, FI = 128, 144, 160
    PP = [176, 208]
    VX, VY, VE, VF, VPS, VAL = 245, 247, 248, 249, 251, 252
    T0 = 253
    VZ = 255
    a("s_and_b32 s12, s3, 1")
    a("s_lshr_b32 s13, s3, 1")
    a("s_lshl_b32 s14, s2, 1")
    a("s_add_u32 s14, s14, s13")
    for q in range(4):
        a("ds_read_b128 %s, v%d offset:%d" % (vr(FR + 4 * q, 4), V16, L_FR + q * 1024))
        a("ds_read_b128 %s, v%d offset:%d" % (vr(FI + 4 * q, 4), V16, L_FI + q * 1024))
        a("ds_read_b128 %s, v%d offset:%d" % (vr(TW + 4 * q, 4), V16, L_TW + q * 1024))
    a("v_lshrrev_b32 v%d, 1, v%d" % (T0, VL))
    a("s_lshl_b32 s15, s12, 7")
    a("v_add_u32 v%d, s15, v%d" % (T0, T0))
    a("v_and_b32 v%d, 16, v%d" % (T0 + 1, V16))
    a("s_lshl_b32 s15, s13, 5")
    a("v_add_u32 v%d, s15, v%d" % (T0 + 1, T0 + 1))
    a("v_lshl_add_u32 v%d, v%d, 6, v%d" % (T0, T0, T0 + 1))
    for (vreg, x, sh, base) in ((VX, 0, 12, L_X), (VY, 1, 12, L_X), (VE, 0, 11, L_E), (VF, 2, 11, L_E)):
        a("s_xor_b32 s16, s3, %d" % x)
        a("s_lshl_b32 s16, s16, %d" % sh)
        a("s_add_u32 s16, s16, %d" % base)
        a("v_add_u32 v%d, s16, v%d" % (vreg, V16))
    a("s_lshl_b32 s16, s12, 1")
    a("s_add_u32 s16, s16, s13")
    a("s_lshl_b32 s16, s16, 4")
    a("v_lshrrev_b32 v%d, 2, v%d" % (VPS, VL))
    a("v_add_u32 v%d, s16, v%d" % (VPS, VPS))
    a("v_and_b32 v%d, 48, v%d" % (VAL, V16))
    a("v_lshl_add_u32 v%d, v%d, 14, v%d" % (VPS, VPS, VAL))
    a("s_lshl_b32 s16, s12, 7")
    a("v_add_u32 v%d, s16, v%d" % (VAL, VL))
    a("v_lshlrev_b32 v%d, 5, v%d" % (VAL, VAL))
    a("s_lshl_b32 s44, s2, 6")
    a("s_add_u32 s44, s44, 0x%x" % PART)
    a("s_and_b32 s45, s2, 7")
    a("s_lshl_b32 s45, s45, 13")
    a("s_lshl_b32 s18, s12, 12")
    a("s_add_u32 s18, s18, s45")
    a("s_add_u32 s18, s18, 0x%x" % FN)
    a("s_add_u32 s45, s45, 0x%x" % AVEC)
    a("s_lshl_b32 s24, s2, 14")
    a("s_add_u32 s17, s24, 4096")
    a("s_mul_i32 s46, s13, %d" % CS)
    a("s_lshl_b32 s47, s12, 12")
    a("s_add_u32 s47, s47, s46")
    a("s_add_u32 s47, s47, 4096")
    a("s_lshl_b32 s28, s3, 2")
    a("s_xor_b32 s29, s28, 4")
    a("s_xor_b32 s30, s28, 8")
    a("v_mov_b32 v%d, 0" % VZ)
    a("s_waitcnt lgkmcnt(0)")
    lds_wait(a, "CE", VZ, T0 + 1, LF_E, 1, "s15")
    a("s_mov_b32 s27, 0")
    if P["DN"]:
        a("s_sleep %d" % P["DN"])
    a.label("C_POLLN")
    for g in range(4):
        a("buffer_load_dwordx4 %s, v%d, s[8:11], s18 offen offset:%d sc1" % (vr(OQ + 4 * g, 4), V16, g * 1024))
    a("s_waitcnt vmcnt(0)")
    a("v_min3_u32 v%d, v%d, v%d, v%d" % (T0 + 1, OQ, OQ + 1, OQ + 2))
    a("v_min3_u32 v%d, v%d, v%d, v%d" % (DAr, OQ + 3, OQ + 4, OQ + 5))
    for k, q in enumerate(range(6, 16, 2)):
        t = (T0 + 1, DAr)[k % 2]
        a("v_min3_u32 v%d, v%d, v%d, v%d" % (t, t, OQ + q, OQ + q + 1))
    a("v_min_u32 v%d, v%d, v%d" % (T0 + 1, T0 + 1, DAr))
    a("v_cmp_eq_u32 vcc, 0, v%d" % (T0 + 1))
    poll_exit(a, "C_POLLN", None, P["DPN"])
    stamp(a, "FN seen")
    stamp_val(a, "s27", "pollsN")
    for g in range(4):
        a("buffer_load_dwordx4 %s, v%d, s[8:11], s%d offen offset:%d sc1" % (vr(OP + 4 * g, 4), T0, (24, 17)[g // 2], (g % 2) * 2048))
    a("s_lshl_b32 s16, s3, 13")
    a("s_add_u32 s31, s16, %d" % L_STASH)
    a("v_add_u32 v%d, s31, v%d" % (T0, V16))
    for g in range(4):
        a("ds_write_b128 v%d, %s offset:%d" % (T0, vr(OQ + 4 * g, 4), 4096 + g * 1024))
    lds_wait(a, "CW", VZ, T0 + 1, LF_W, 1, "s32")
    a("s_sub_u32 s25, 250, s32")
    a("s_lshl_b32 s25, s25, 23")
    for r in range(16):
        a("v_mul_f32 v%d, s25, v%d" % (OQ + r, OQ + r))

    def mf(kind, D, opreg, F, t, cinit):
        c = cinit if t == 0 else vr(D, 16)
        if kind == "A":
            return "v_mfma_f32_32x32x16_f16 %s, %s, %s, %s" % (vr(D, 16), vr(opreg + 4 * t, 4), vr(F + 4 * t, 4), c)
        return "v_mfma_f32_32x32x16_f16 %s, %s, %s, %s" % (vr(D, 16), vr(F + 4 * t, 4), vr(opreg + 4 * t, 4), c)

    def stage(kind, Dr, Di, opreg, valu, per, cr="0", ci="0"):
        mfs = []
        for t in range(4):
            rd = per * (t + 1) + 2
            mfs.append((rd, mf(kind, Dr, opreg, FR, t, cr)))
            mfs.append((rd + per // 2, mf(kind, Di, opreg, FI, t, ci)))
        interleave(a, valu, mfs)

    def twiddle_ops(Dr, Di, tmp):
        v = []
        for t in range(4):
            for p in range(4):
                r = 4 * t + p
                v.append("v_cvt_pk_f16_f32 v%d, v%d, v%d" % (tmp + r, Dr + r, Di + r))
            ops = [cmul_ops(OP + 4 * t + p, tmp + 4 * t + p, TW + 4 * t + p) for p in range(4)]
            v += [o[0] for o in ops] + [o[1] for o in ops]
        return v

    for layer in range(4):
        ty = layer % 2
        Pb, Qb = PP[ty], PP[ty] + 16
        a.comment("==== layer %d ====" % layer)
        if layer == 0:
            for t in range(4):
                a("s_waitcnt vmcnt(%d)" % (3 - t))
                a(mf("A", DAr, OP, FR, t, "0"))
                a("ds_write_b128 v%d, %s offset:%d" % (T0, vr(OP + 4 * t, 4), t * 1024))
                for r in range(4 * t, 4 * t + 4):
                    a("v_fma_mix_f32 v%d, v%d, v%d, 0 op_sel_hi:[1,0,0]" % (SR + r, OP + r, OQ + r))
                a(mf("A", DAi, OP, FI, t, "0"))
                for r in range(4 * t, 4 * t + 4):
                    a("v_fma_mix_f32 v%d, -v%d, v%d, 0 op_sel:[1,0,0] op_sel_hi:[1,0,0]" % (SI + r, OP + r, OQ + r))
            stamp(a, "N loaded")
            a("s_waitcnt lgkmcnt(0)")
        else:
            stamp(a, "layer start")
            v = []
            for t in range(4):
                for p in range(4):
                    r = 4 * t + p
                    v.append("v_fma_mixlo_f16 v%d, v%d, |v%d|, 0" % (OP + r, SR + r, DBr + r))
                for p in range(4):
                    r = 4 * t + p
                    v.append("v_fma_mixhi_f16 v%d, v%d, -|v%d|, 0" % (OP + r, SI + r, DBr + r))
            stage("A", DAr, DAi, OP, v, 8)
        if layer == 0:
            pass
        stage("B", DBr, DBi, OP, twiddle_ops(DAr, DAi, OQ), 12)
        a("v_mov_b32 v%d, s28" % T0)
        a("v_mov_b32 v%d, %d" % (T0 + 1, layer + 1))
        for g in range(4):
            for p in range(4):
                r = 4 * g + p
                a("v_cvt_pk_f16_f32 v%d, v%d, v%d" % (OP + r, DBr + r, DBi + r))
            a("ds_write_b128 v%d, %s offset:%d" % (VX, vr(OP + 4 * g, 4), g * 1024))
        a("ds_write_b32 v%d, v%d offset:%d" % (T0, T0 + 1, LF_X))
        own1 = ["v_pk_mul_f16 v%d, v%d, v%d op_sel:[0,0] op_sel_hi:[1,0] neg_hi:[1,0]" % (DBr + r, OP + r, Pb + r) for r in range(16)]
        own2 = ["v_pk_fma_f16 v%d, v%d, v%d, v%d op_sel:[1,1,0] op_sel_hi:[0,1,1] neg_lo:[1,0,0] neg_hi:[1,0,0]" % (DBr + r, OP + r, Pb + r, DBr + r) for r in range(16)]
        if layer == 0:
            a("s_add_u32 s16, s46, %d" % L_PQ[0])
            a("v_add_u32 v%d, s16, v%d" % (DAr, V16))
            a("s_add_u32 s16, s47, %d" % L_PQ[0])
            a("v_add_u32 v%d, s16, v%d" % (DAr + 1, V16))
            reads = ["ds_read_b128 %s, v%d offset:%d" % (vr(Pb + 4 * g, 4), DAr, g * 1024) for g in range(4)]
            reads += ["ds_read_b128 %s, v%d offset:%d" % (vr(Qb + 4 * g, 4), DAr + 1, g * 1024) for g in range(4)]
            lds_spec(a, "PQ0", VZ, T0 + 1, LF_PQ, 4, reads)
            a("s_waitcnt lgkmcnt(0)")
        for x in own1[:8]:
            a(x)
        a("v_mov_b32 v%d, s29" % T0)
        reads = ["ds_read_b128 %s, v%d offset:%d" % (vr(OQ + 4 * g, 4), VY, g * 1024) for g in range(4)]
        a("ds_read_b32 v%d, v%d offset:%d" % (T0 + 1, T0, LF_X))
        for r_ in reads:
            a(r_)
        for x in own1[8:] + own2:
            a(x)
        a("s_waitcnt lgkmcnt(4)")
        a("v_readfirstlane_b32 s16, v%d" % (T0 + 1))
        a("s_cmp_ge_u32 s16, %d" % (layer + 1))
        a.branch("s_cbranch_scc1 C_XOK_%d" % layer)
        lds_spec(a, "X%d" % layer, VZ, T0 + 1, LF_X, layer + 1, reads, vflagaddr=T0)
        a.label("C_XOK_%d" % layer)
        v = []
        for t in range(4):
            v.append("s_waitcnt lgkmcnt(%d)" % (3 - t))
            for p in range(4):
                r = 4 * t + p
                v.append("v_pk_fma_f16 v%d, v%d, v%d, v%d op_sel:[0,0,0] op_sel_hi:[1,0,1] neg_hi:[1,0,0]" % (DBr + r, OQ + r, Qb + r, DBr + r))
            for p in range(4):
                r = 4 * t + p
                v.append("v_pk_fma_f16 v%d, v%d, v%d, v%d op_sel:[1,1,0] op_sel_hi:[0,1,1] neg_lo:[1,0,0] neg_hi:[1,0,0]" % (DBr + r, OQ + r, Qb + r, DBr + r))
        stage("A", DAr, DAi, DBr, v, 9)
        stage("B", SR, SI, OP, twiddle_ops(DAr, DAi, OQ), 12, cr=vr(SR, 16), ci=vr(SI, 16))
        if layer == 3:
            break
        a("v_mov_b32 v%d, s28" % T0)
        a("v_mov_b32 v%d, %d" % (T0 + 1, layer + 1))
        a("v_mov_b32 v%d, s30" % DBi)
        a("v_mov_b32 v%d, 1" % (DBi + 2))
        a("s_cmp_lg_u32 s14, 387")
        a.branch("s_cbranch_scc1 CC_REG_%d" % layer)
        for r in range(16):
            a("v_mov_b32 v%d, 0" % (SI + r))
        for r in range(16):
            a("v_mul_f32 v%d, %s, v%d" % (DAi + r, hexf(0.7071067811865476), SR + r))
        for r in range(16):
            a("v_mul_f32 v%d, v%d, v%d" % (DAr + r, DAi + r, DAi + r))
        a("s_cmp_eq_u32 s13, 0")
        a.branch("s_cbranch_scc1 CC_S0_%d" % layer)
        a.branch("s_branch CC_S1_%d" % layer)
        a.label("CC_REG_%d" % layer)
        a("s_cmp_eq_u32 s13, 0")
        a.branch("s_cbranch_scc0 CC_E1_%d" % layer)
        for variant in range(2):
            send = DAr + (8 if variant == 0 else 0)
            keep = DAr + (0 if variant == 0 else 8)
            so = send - DAr
            ko = keep - DAr
            if variant == 1:
                a.label("CC_E1_%d" % layer)
            for r in range(8):
                a("v_mul_f32 v%d, v%d, v%d" % (send + r, SR + so + r, SR + so + r))
            for r in range(8):
                a("v_fmac_f32 v%d, v%d, v%d" % (send + r, SI + so + r, SI + so + r))
            a("ds_write_b128 v%d, %s" % (VE, vr(send, 4)))
            a("ds_write_b128 v%d, %s offset:1024" % (VE, vr(send + 4, 4)))
            a("ds_write_b32 v%d, v%d offset:%d" % (T0, T0 + 1, LF_EN))
            for r in range(8):
                a("v_mul_f32 v%d, v%d, v%d" % (keep + r, SR + ko + r, SR + ko + r))
            for r in range(8):
                a("v_fmac_f32 v%d, v%d, v%d" % (keep + r, SI + ko + r, SI + ko + r))
            a.branch("s_branch CC_R%d_%d" % (variant, layer))
            a.label("CC_S%d_%d" % (variant, layer))
            a("ds_write_b128 v%d, %s" % (VE, vr(send, 4)))
            a("ds_write_b128 v%d, %s offset:1024" % (VE, vr(send + 4, 4)))
            a("ds_write_b32 v%d, v%d offset:%d" % (T0, T0 + 1, LF_EN))
            a.label("CC_R%d_%d" % (variant, layer))
            reads = ["ds_read_b128 %s, v%d" % (vr(DAi, 4), VF), "ds_read_b128 %s, v%d offset:1024" % (vr(DAi + 4, 4), VF)]
            lds_spec(a, "EN%d_%d" % (variant, layer), VZ, DBi + 1, LF_EN, layer + 1, reads, vflagaddr=DBi)
            a("s_waitcnt lgkmcnt(0)")
            for q in range(8):
                a("v_add_f32 v%d, v%d, v%d" % (DAi + q, DAi + q, keep + q))
            if variant == 0:
                a.branch("s_branch CC_E2_%d" % layer)
        a.label("CC_E2_%d" % layer)
        for q in range(4):
            a("v_cvt_pk_bf16_f32 v%d, v%d, v%d" % (DAi + 8 + q, DAi + 2 * q, DAi + 2 * q + 1))
        for q in range(4):
            a("v_or_b32 v%d, 0x80008000, v%d" % (DAi + 8 + q, DAi + 8 + q))
        a("buffer_store_dwordx4 %s, v%d, s[8:11], s44 offen sc1" % (vr(DAi + 8, 4), VPS))
        a("s_mov_b64 exec, 1")
        a("ds_add_u32 v%d, v%d offset:%d" % (VZ, DBi + 2, LF_PS))
        a("s_mov_b64 exec, -1")
        a("s_add_u32 s44, s44, 0x100000")
        stamp(a, "part stored")
        if layer == 0:
            lds_wait(a, "CB", VZ, T0, LF_B, 1, "s33", sleep=2)
            a("s_sub_u32 s34, s32, s33")
            a("s_add_u32 s34, s34, 127")
            a("s_lshl_b32 s34, s34, 23")
            a("s_sub_u32 s35, s33, s32")
            a("s_add_u32 s35, s35, 127")
            a("s_lshl_b32 s35, s35, 23")
        for r in range(32):
            a("v_mul_f32 v%d, s%d, v%d" % (SR + r, 34 if ty == 0 else 35, SR + r))
        if layer == 0:
            a("s_add_u32 s16, s46, %d" % L_PQ[1])
            a("v_add_u32 v%d, s16, v%d" % (DAr, V16))
            a("s_add_u32 s16, s47, %d" % L_PQ[1])
            a("v_add_u32 v%d, s16, v%d" % (DAr + 1, V16))
            lds_wait(a, "CPB", VZ, T0, LF_PQ, 8, "s16", sleep=2)
            for g in range(4):
                a("ds_read_b128 %s, v%d offset:%d" % (vr(PP[1] + 4 * g, 4), DAr, g * 1024))
                a("ds_read_b128 %s, v%d offset:%d" % (vr(PP[1] + 16 + 4 * g, 4), DAr + 1, g * 1024))
        if layer == 2:
            a("v_add_u32 v%d, s31, v%d" % (T0 + 1, V16))
            for g in range(4):
                a("ds_read_b128 %s, v%d offset:%d" % (vr(PP[0] + 4 * g, 4), T0 + 1, g * 1024))
                a("ds_read_b128 %s, v%d offset:%d" % (vr(PP[0] + 16 + 4 * g, 4), T0 + 1, 4096 + g * 1024))
            a("s_sub_u32 s25, 250, s33")
            a("s_lshl_b32 s25, s25, 23")
            a("s_waitcnt lgkmcnt(0)")
            for r in range(16):
                a("v_mul_f32 v%d, s25, v%d" % (PP[0] + 16 + r, PP[0] + 16 + r))
        lds_wait(a, "CH%d" % layer, VZ, T0, LF_H1, layer + 1, "s16", sleep=1)
        stamp(a, "h1 seen")
        a("s_mov_b32 s27, 0")
        if P["D2"]:
            a("s_sleep %d" % P["D2"])
        a.label("C_POLL2_%d" % layer)
        for g in range(4):
            a("buffer_load_dwordx4 %s, v%d, s[8:11], s45 offen offset:%d sc1" % (vr(DBr + 4 * g, 4), VAL, (g // 2) * 2048 + (g % 2) * 16))
        a("s_waitcnt vmcnt(0)")
        and_or_tree(a, range(DBr, DBr + 16), T0, T0 + 1, True)
        a("v_cmp_le_i32 vcc, 0, v%d" % T0)
        poll_exit(a, "C_POLL2_%d" % layer, None)
        a("s_add_u32 s45, s45, 0x10000")
        stamp_val(a, "s27", "polls2")
    NN, IO = PP[0], PP[0] + 16
    a("v_lshrrev_b32 v%d, 2, v%d" % (T0, VL))
    a("s_lshl_b32 s16, s12, 6")
    a("v_add_u32 v%d, s16, v%d" % (T0, T0))
    a("v_and_b32 v%d, 48, v%d" % (T0 + 1, V16))
    a("v_lshl_add_u32 v%d, v%d, 15, v%d" % (T0, T0, T0 + 1))
    a("s_lshl_b32 s16, s14, 6")
    a("s_add_u32 s16, s16, 0x%x" % DBUF)
    a("s_mov_b32 s17, 0x3c003c00")
    a("s_cmp_eq_u32 s14, 387")
    a("s_cselect_b32 s17, 0x00003800, s17")
    a("s_lshl_b32 s15, s33, 23")
    a("v_mov_b32 v%d, 1" % (T0 + 1))
    for g in range(4):
        for p in range(4):
            r = 4 * g + p
            a("v_fma_mixlo_f16 v%d, v%d, -v%d, v%d op_sel_hi:[1,0,0]" % (DAr + r, NN + r, IO + r, SR + r))
        for p in range(4):
            r = 4 * g + p
            a("v_fma_mixhi_f16 v%d, v%d, v%d, v%d op_sel:[1,0,0] op_sel_hi:[1,0,0]" % (DAr + r, NN + r, IO + r, SI + r))
        for p in range(4):
            r = 4 * g + p
            a("v_pk_mul_f16 v%d, v%d, s17" % (DAr + r, DAr + r))
        for p in range(4):
            r = 4 * g + p
            a("v_or_b32 v%d, 1, v%d" % (DAr + r, DAr + r))
        a("buffer_store_dwordx4 %s, v%d, s[8:11], s16 offen sc1" % (vr(DAr + 4 * g, 4), T0))
        if g < 3:
            a("s_add_u32 s16, s16, 0x80000")
    a("s_mov_b64 exec, 1")
    a("ds_add_u32 v%d, v%d offset:%d" % (VZ, T0 + 1, LF_DS))
    a("s_mov_b64 exec, -1")
    stamp(a, "delta stored")
    n_comp = _nst[0]
    a.branch("s_branch L_FINAL")

    a.label("L_HELPER")
    _nst[0] = n_common
    H = 0
    VHT, VQT, VPW, VSG, VSH, VAS, VPL = 245, 247, 251, 252, 253, 254, 31
    VZ = 255
    ONE = 30
    a("v_mov_b32 v%d, 0" % VZ)
    a("v_mov_b32 v%d, 1" % ONE)
    a("s_cmp_lg_u32 s3, 4")
    a.branch("s_cbranch_scc1 H_SETUP")
    srd(a, 44, 42, 256)
    a("v_lshlrev_b32 v%d, 2, v%d" % (H + 1, VNU))
    a("s_mov_b32 s27, 0")
    a.label("H_POLLE")
    a("buffer_load_dword v%d, v%d, s[44:47], 0 offen offset:128 sc1" % (H + 2, H + 1))
    a("s_waitcnt vmcnt(0)")
    a("v_cmp_gt_u32 vcc, 8, v%d" % (H + 2))
    poll_exit(a, "H_POLLE", None, 4)
    a("ds_write_b32 v%d, v%d offset:%d" % (VZ, ONE, LF_E))
    a.label("H_SETUP")
    stamp(a, "early ok")
    a("v_and_b32 v%d, 255, v%d" % (H, VT))
    a("v_lshlrev_b32 v%d, 4, v%d" % (VHT, H))
    a("v_lshrrev_b32 v%d, 2, v%d" % (H + 1, H))
    a("v_and_b32 v%d, 1, v%d" % (H + 2, H))
    a("v_lshlrev_b32 v%d, 4, v%d" % (VQT, H + 1))
    a("v_lshl_add_u32 v%d, v%d, 3, v%d" % (VQT, H + 2, VQT))
    a("v_bfe_u32 v%d, v%d, 1, 1" % (H + 3, H))
    a("v_mul_u32_u24 v%d, %d, v%d" % (H + 3, CS, H + 3))
    a("v_add_u32 v%d, v%d, v%d" % (VPW, VQT, H + 3))
    a("v_lshlrev_b32 v%d, 2, v%d" % (VSG, H + 1))
    a("v_lshlrev_b32 v%d, 4, v%d" % (VSH, H + 2))
    QT = 16
    for g in range(4):
        a("ds_read_b64 %s, v%d offset:%d" % (vr(QT + 2 * g, 2), VQT, L_QT + g * 1024))
    a("s_lshl_b32 s46, s2, 15")
    a("s_add_u32 s46, s46, 0x%x" % WBUF)
    a("s_and_b32 s47, s2, 7")
    a("s_lshl_b32 s47, s47, 11")
    a("s_add_u32 s47, s47, 0x%x" % FW)

    def flag_poll(tag, ty, lf, emin_sreg):
        FL = 32
        a("v_lshlrev_b32 v%d, 5, v%d" % (H + 1, VL))
        a("s_add_u32 s16, s47, %d" % (ty * 16384))
        a("s_mov_b32 s27, 0")
        a.label(tag)
        a("buffer_load_dwordx4 %s, v%d, s[8:11], s16 offen sc1" % (vr(FL, 4), H + 1))
        a("buffer_load_dwordx4 %s, v%d, s[8:11], s16 offen offset:16 sc1" % (vr(FL + 4, 4), H + 1))
        a("s_waitcnt vmcnt(0)")
        a("v_min3_u32 v%d, v%d, v%d, v%d" % (H + 2, FL, FL + 1, FL + 2))
        a("v_min3_u32 v%d, v%d, v%d, v%d" % (H + 3, FL + 3, FL + 4, FL + 5))
        a("v_min3_u32 v%d, v%d, v%d, v%d" % (H + 2, H + 2, FL + 6, FL + 7))
        a("v_min_u32 v%d, v%d, v%d" % (H + 2, H + 2, H + 3))
        a("v_cmp_eq_u32 vcc, 0, v%d" % (H + 2))
        poll_exit(a, tag, None, 2)
        a("s_cmp_ge_u32 s2, 128")
        a("s_cselect_b64 vcc, -1, 0")
        for q in range(4):
            a("v_cndmask_b32 v%d, v%d, v%d, vcc" % (FL + 8 + q, FL + 2 * q, FL + 2 * q + 1))
        a("ds_write_b128 v%d, %s offset:%d" % (V16, vr(FL + 8, 4), L_SIGT + ty * 1024))
        for q in range(8):
            a("v_and_b32 v%d, 0x00ff00ff, v%d" % (FL + 12 + q, FL + q))
            a("v_pk_lshrrev_b16 v%d, 8, v%d op_sel_hi:[0,1]" % (FL + q, FL + q))
        for q in range(8):
            a("v_pk_max_u16 v%d, v%d, v%d" % (FL + q, FL + q, FL + 12 + q))
        for st in (4, 2, 1):
            for q in range(st):
                a("v_pk_max_u16 v%d, v%d, v%d" % (FL + q, FL + q, FL + q + st))
        a("v_lshrrev_b32 v%d, 16, v%d" % (FL + 1, FL))
        a("v_and_b32 v%d, 0xffff, v%d" % (FL, FL))
        a("v_max_u32 v%d, v%d, v%d" % (FL, FL, FL + 1))
        for o in wave_allreduce_ops("v_max_u32", FL, FL + 1):
            a(o)
        a("v_max_u32 v%d, %s, v%d" % (FL, emin_sreg, FL))
        a("v_min_u32 v%d, 0xdc, v%d" % (FL, FL))
        a("ds_write_b32 v%d, v%d offset:%d" % (VZ, FL, lf))

    def pq_loads(ty):
        for g in range(4):
            a("s_add_u32 s16, s46, %d" % (ty * 16384 + g * 4096))
            a("buffer_load_dwordx4 %s, v%d, s[8:11], s16 offen sc1" % (vr(64 + 4 * g, 4), VHT))
        for g in range(4):
            a("ds_read_b32 v%d, v%d offset:%d" % (80 + g, VSG, L_SIGT + ty * 1024 + g * 256))

    def pq_factors(sK):
        for g in range(4):
            a("v_lshrrev_b32 v%d, v%d, v%d" % (80 + g, VSH, 80 + g))
        for g in range(4):
            for u in range(2):
                a("v_bfe_u32 v%d, v%d, %d, 8" % (84 + 2 * g + u, 80 + g, 8 * u))
        for k in range(8):
            a("v_lshl_add_u32 v%d, v%d, 23, %s" % (84 + k, 84 + k, sK))
        for k in range(8):
            a("v_cvt_pk_f16_f32 v%d, v%d, v%d" % (84 + k, 84 + k, 84 + k))
        for k in range(8):
            a("v_pk_mul_f16 v%d, v%d, v%d" % (92 + k, QT + k, 84 + k))

    def pq_process(ty, younger):
        LD, F, QF, TT = 64, 84, 92, 100
        a("v_add_u32 v%d, %d, v%d" % (H + 1, L_PQ[ty], VPW))
        for g in range(4):
            a("s_waitcnt vmcnt(%d)" % (3 - g + younger))
            o = TT + 8 * g
            for u in range(2):
                a("v_pk_mul_f16 v%d, v%d, v%d" % (o + u, LD + 4 * g + 2 * u, F + 2 * g + u))
                a("v_pk_mul_f16 v%d, v%d, v%d op_sel:[0,0] op_sel_hi:[1,0]" % (o + 6 + u, LD + 4 * g + 2 * u + 1, QF + 2 * g + u))
            for u in range(2):
                Qr = LD + 4 * g + 2 * u + 1
                a("v_pk_fma_f16 v%d, v%d, v%d, v%d op_sel:[1,1,0] op_sel_hi:[0,1,1] neg_lo:[1,0,0]" % (o + 2 + u, Qr, QF + 2 * g + u, o + 6 + u))
                a("v_pk_fma_f16 v%d, v%d, v%d, v%d op_sel:[1,1,0] op_sel_hi:[0,1,1] neg_hi:[1,0,0]" % (o + 4 + u, Qr, QF + 2 * g + u, o + 6 + u))
            for k in range(3):
                a("ds_write_b64 v%d, %s offset:%d" % (H + 1, vr(o + 2 * k, 2), k * 4096 + g * 1024))
        a("s_mov_b64 exec, 1")
        a("ds_add_u32 v%d, v%d offset:%d" % (VZ, ONE, LF_PQ))
        a("s_mov_b64 exec, -1")

    a("s_cmp_lg_u32 s3, 4")
    a.branch("s_cbranch_scc1 H_W0")
    if P["DW"]:
        a("s_sleep %d" % P["DW"])
    a("s_mov_b32 s17, 0x61")
    flag_poll("H_POLLW", 0, LF_W, "s17")
    a.label("H_W0")
    lds_wait(a, "HW", VZ, H + 1, LF_W, 1, "s32")
    stamp(a, "FW seen")
    pq_loads(0)
    a("v_subrev_u32 v%d, %d, v%d" % (H + 4, 4 * BS, VWR))
    a("v_subrev_u32 v%d, %d, v%d" % (H + 5, 64 * 32768, VWS))
    SB = 140
    for it in range(4):
        off = L_WSB + it * 4 * BS
        a("ds_read_b64 %s, v%d offset:%d" % (vr(SB + 4 * it, 2), H + 4, off))
        a("ds_read_b64 %s, v%d offset:%d" % (vr(SB + 4 * it + 2, 2), H + 4, off + BS))
    a("s_sub_u32 s24, 127, s32")
    a("s_lshl_b32 s24, s24, 23")
    a("s_add_u32 s17, s19, 0x%x" % (WBUF + 16384))
    a("s_waitcnt lgkmcnt(8)")
    pq_factors("s24")
    for it in range(4):
        a("s_waitcnt lgkmcnt(%d)" % (6 - 2 * it))
        a("s_add_u32 s16, s17, 0x%x" % (it * 64 * 32768))
        a("buffer_store_dwordx4 %s, v%d, s[8:11], s16 offen sc1" % (vr(SB + 4 * it, 4), H + 5))
    pq_process(0, 4)
    stamp(a, "pqA")
    a("ds_read_b128 %s, v%d offset:%d" % (vr(40, 4), VZ, L_EXP + 32))
    a("ds_read_b128 %s, v%d offset:%d" % (vr(44, 4), VZ, L_EXP + 48))
    a("s_waitcnt vmcnt(0)")
    a("s_mov_b64 exec, 1")
    a("ds_add_u32 v%d, v%d offset:%d" % (VZ, ONE, LF_BS))
    a("s_mov_b64 exec, -1")
    for q in range(4):
        a("v_mov_b32 v%d, 0" % (H + 4 + q))
    a("s_cmp_lg_u32 s3, 5")
    a.branch("s_cbranch_scc1 H_B0")
    a("s_waitcnt lgkmcnt(0)")
    sig_pack(40, 48)
    a("v_lshlrev_b32 v%d, 11, v%d" % (H + 2, VL))
    a("s_lshl_b32 s17, s2, 3")
    a("s_add_u32 s17, s17, 0x%x" % FB)
    lds_wait(a, "HBS", VZ, H + 1, LF_BS, 4, "s16")
    a("s_mov_b64 exec, 0xff")
    a("buffer_store_dwordx2 %s, v%d, s[8:11], s17 offen sc1" % (vr(48, 2), H + 2))
    a("s_mov_b64 exec, -1")
    a("s_sleep 12")
    flag_poll("H_POLLB", 1, LF_B, "s32")
    a.label("H_B0")
    lds_wait(a, "HB", VZ, H + 1, LF_B, 1, "s33", sleep=2)
    stamp(a, "FB seen")
    pq_loads(1)
    a("s_sub_u32 s24, 127, s33")
    a("s_lshl_b32 s24, s24, 23")
    a("s_waitcnt lgkmcnt(0)")
    pq_factors("s24")
    pq_process(1, 0)
    stamp(a, "pqB")
    a("s_lshl_b32 s15, s33, 23")
    a("s_cmp_eq_u32 s3, 4")
    a.branch("s_cbranch_scc1 H_RED")
    lds_wait(a, "HC", VZ, H + 1, LF_H1, 1, "s16", sleep=4)
    a("s_sub_u32 s16, s3, 5")
    a("s_lshl_b32 s16, s16, 10")
    a("s_lshl_b32 s17, s2, 14")
    a("s_add_u32 s17, s17, s16")
    a("s_add_u32 s17, s17, 0x%x" % DBUF)
    for k in range(5):
        a("buffer_store_dwordx4 %s, v%d, s[8:11], s17 offen sc1" % (vr(H + 4, 4), V16))
        a("s_add_u32 s17, s17, 3072")
    a("s_lshl_b32 s17, s2, 14")
    a("s_add_u32 s17, s17, 0x%x" % (DBUF + 15 * 1024))
    a("s_lshl_b32 s18, s2, 12")
    a("s_add_u32 s18, s18, 0x%x" % (PART + 2 * MB))
    a("s_lshl_b32 s16, s16, 1")
    a("s_add_u32 s24, s18, s16")
    a("s_sub_u32 s25, s24, 1024")
    a("s_cmp_eq_u32 s3, 5")
    a("s_cselect_b32 s25, s17, s25")
    a("s_cmp_eq_u32 s3, 7")
    a("s_cselect_b32 s24, s25, s24")
    a("buffer_store_dwordx4 %s, v%d, s[8:11], s24 offen sc1" % (vr(H + 4, 4), V16))
    a("buffer_store_dwordx4 %s, v%d, s[8:11], s25 offen sc1" % (vr(H + 4, 4), V16))
    a("s_waitcnt vmcnt(0)")
    a("s_mov_b64 exec, 1")
    a("ds_add_u32 v%d, v%d offset:%d" % (VZ, ONE, LF_BS))
    a("s_mov_b64 exec, -1")
    if STAMPS:
        for k in range(6):
            a("s_mov_b32 s%d, 0" % (50 + _nst[0] + k))
    a.branch("s_branch L_FINAL")
    a.label("H_RED")
    SEL = 24
    a("v_bfe_u32 v%d, v%d, 1, 2" % (H + 1, VL))
    a("v_and_b32 v%d, 1, v%d" % (H + 2, VL))
    a("v_lshlrev_b32 v%d, 4, v%d" % (H + 2, H + 2))
    a("v_mov_b32 v%d, 0x3f80" % (H + 3))
    a("v_lshlrev_b32 v%d, v%d, v%d" % (H + 3, H + 2, H + 3))
    for d in range(4):
        a("v_cmp_eq_u32 vcc, %d, v%d" % (d, H + 1))
        a("v_cndmask_b32 v%d, 0, v%d, vcc" % (SEL + d, H + 3))
    a("v_and_b32 v%d, 7, v%d" % (VAS, VL))
    a("v_lshlrev_b32 v%d, 13, v%d" % (VAS, VAS))
    a("v_and_b32 v%d, 16, v%d" % (H + 1, VL))
    a("v_add_u32 v%d, v%d, v%d" % (VAS, VAS, H + 1))
    a("s_lshr_b32 s44, s2, 5")
    a("s_lshl_b32 s44, s44, 3")
    a("s_and_b32 s45, s2, 7")
    a("s_add_u32 s44, s44, s45")
    a("s_bfe_u32 s46, s2, 0x20003")
    a("s_lshl_b32 s45, s44, 2")
    a("s_add_u32 s45, s45, s46")
    a("s_lshl_b32 s45, s45, 5")
    a("s_add_u32 s45, s45, 0x%x" % AVEC)
    a("s_lshl_b32 s44, s44, 14")
    a("s_lshl_b32 s46, s46, 4")
    a("s_add_u32 s44, s44, s46")
    a("s_add_u32 s44, s44, 0x%x" % PART)
    a("v_lshlrev_b32 v%d, 6, v%d" % (VPL, VL))
    for k, sE in enumerate(("s32", "s33")):
        a("s_sub_u32 s16, 254, %s" % sE)
        a("s_lshl_b32 s16, s16, 23")
        a("v_mov_b32 v%d, s16" % (8 + k))
        a("v_mul_f32 v%d, v%d, v%d" % (8 + k, 8 + k, 8 + k))
        a("v_mul_f32 v%d, %s, v%d" % (8 + k, hexf(EPS), 8 + k))
    a("s_sub_u32 s34, s33, s32")
    a("s_add_u32 s34, s34, 126")
    a("s_lshl_b32 s34, s34, 23")
    a("s_sub_u32 s35, s32, s33")
    a("s_add_u32 s35, s35, 126")
    a("s_lshl_b32 s35, s35, 23")
    a("s_mov_b32 s36, %s" % hexf(1.0 / 2048))
    for layer in range(3):
        ty = layer % 2
        PB, RD = 32, 48
        if layer == 1:
            lds_wait(a, "HBS2", VZ, H + 1, LF_BS, 7, "s16", sleep=2)
        lds_wait(a, "HPS%d" % layer, VZ, H + 1, LF_PS, 4 * (layer + 1), "s16", sleep=1)
        a("s_mov_b32 s27, 0")
        if P["D1"]:
            a("s_sleep %d" % P["D1"])
        a.label("H_POLL1_%d" % layer)
        for q in range(4):
            a("s_add_u32 s16, s44, %d" % (q * 4096 + layer * MB))
            a("buffer_load_dwordx4 %s, v%d, s[8:11], s16 offen sc1" % (vr(PB + 4 * q, 4), VPL))
        a("s_waitcnt vmcnt(0)")
        and_or_tree(a, range(PB, PB + 16), H + 1, H + 2, True)
        a("v_and_b32 v%d, 0x80008000, v%d" % (H + 1, H + 1))
        a("v_cmp_ne_u32 vcc, 0x80008000, v%d" % (H + 1))
        poll_exit(a, "H_POLL1_%d" % layer, None)
        for q in range(4):
            a("v_mfma_f32_16x16x32_bf16 %s, %s, %s, %s" % (vr(RD, 4), vr(SEL, 4), vr(PB + 4 * q, 4), "0" if q == 0 else vr(RD, 4)))
        a("v_mov_b32 v%d, %d" % (H + 1, layer + 1))
        for ctl in ("quad_perm:[1,0,3,2]", "quad_perm:[2,3,0,1]", "row_half_mirror", "row_mirror"):
            for r in range(4):
                a("v_add_f32_dpp v%d, v%d, v%d %s row_mask:0xf bank_mask:0xf" % (RD + r, RD + r, RD + r, ctl))
        for r in range(4):
            a("v_fma_f32 v%d, |v%d|, s36, v%d" % (RD + r, RD + r, 8 + ty))
        for r in range(4):
            a("v_rsq_f32 v%d, v%d" % (RD + r, RD + r))
        for r in range(4):
            a("v_mul_f32 v%d, s%d, v%d" % (RD + r, 34 + ty, RD + r))
        for r in range(4):
            a("v_or_b32 v%d, 0x80000000, v%d" % (RD + r, RD + r))
        a("s_mov_b64 exec, 0x00ff00ff")
        a("buffer_store_dwordx4 %s, v%d, s[8:11], s45 offen sc1" % (vr(RD, 4), VAS))
        a("s_mov_b64 exec, -1")
        a("ds_write_b32 v%d, v%d offset:%d" % (VZ, H + 1, LF_H1))
        a("s_add_u32 s45, s45, 0x10000")
        stamp(a, "hop1 done")
        stamp_val(a, "s27", "polls1")
    n_help = _nst[0]

    a.label("L_FINAL")
    _nst[0] = max(n_comp, n_help)
    DL, XL = 0, 8
    GAr, GAi, TW5, GB = 16, 24, 160, 48
    TR, TI, OP, XF = 64, 80, 96, 112
    T = 128
    a("v_lshlrev_b32 v%d, 6, v%d" % (T, VNU))
    a("v_lshl_add_u32 v%d, v%d, 5, v%d" % (T, VH, T))
    for u in range(2):
        a("buffer_load_dwordx4 %s, v%d, s[20:23], s26 offen offset:%d" % (vr(XL + 4 * u, 4), T, 16 * u))
    a("v_bfe_u32 v%d, v%d, 2, 1" % (T + 1, VNU))
    a("v_lshlrev_b32 v%d, 8, v%d" % (T + 1, T + 1))
    a("v_lshrrev_b32 v%d, 3, v%d" % (T + 2, VNU))
    a("v_lshl_add_u32 v%d, v%d, 6, v%d" % (T + 1, T + 2, T + 1))
    a("v_and_b32 v%d, 3, v%d" % (T + 2, VNU))
    a("v_lshl_add_u32 v%d, v%d, 4, v%d" % (T + 1, T + 2, T + 1))
    a("v_lshl_add_u32 v%d, v%d, 9, v%d" % (T + 1, VH, T + 1))
    for q in range(2):
        a("ds_read_b128 %s, v%d offset:%d" % (vr(GAr + 4 * q, 4), T + 1, L_FR + q * 1024))
        a("ds_read_b128 %s, v%d offset:%d" % (vr(GAi + 4 * q, 4), T + 1, L_FI + q * 1024))
    for q in range(4):
        a("ds_read_b128 %s, v%d offset:%d" % (vr(TW5 + 4 * q, 4), T + 1, L_TW + q * 1024))
        a("ds_read_b128 %s, v%d offset:%d" % (vr(GB + 4 * q, 4), V16, L_FR + q * 1024))
    srd(a, 44, 40, XBYTES)
    a("v_lshrrev_b32 v%d, 1, v%d" % (T + 2, VT))
    a("v_lshlrev_b32 v%d, 6, v%d" % (T + 2, T + 2))
    a("v_and_b32 v%d, 16, v%d" % (T + 3, V16))
    a("v_add_u32 v%d, v%d, v%d" % (T + 2, T + 2, T + 3))
    a("s_lshr_b32 s24, s2, 1")
    a("s_lshl_b32 s24, s24, 15")
    a("s_and_b32 s17, s2, 1")
    a("s_lshl_b32 s17, s17, 5")
    a("s_add_u32 s24, s24, s17")
    a("s_add_u32 s24, s24, 0x%x" % DBUF)
    a("s_add_u32 s17, s24, 16384")
    a("s_mov_b32 s18, 0xa8002800")
    a("v_cmp_eq_u32 vcc, 0, v%d" % VH)
    a("s_waitcnt lgkmcnt(0)")
    a("v_pk_mul_f16 v%d, v%d, s18" % (T + 3, GAr + 1))
    a("v_cndmask_b32 v%d, v%d, v%d, vcc" % (TW5, TW5, T + 3))
    lds_wait(a, "FD", 255, T + 3, LF_DS, 4, "s16", sleep=1)
    a("s_mov_b32 s27, 0")
    if P["D5"]:
        a("s_sleep %d" % P["D5"])
    a.label("F_POLL")
    a("buffer_load_dwordx4 %s, v%d, s[8:11], s24 offen sc1" % (vr(DL, 4), T + 2))
    a("buffer_load_dwordx4 %s, v%d, s[8:11], s17 offen sc1" % (vr(DL + 4, 4), T + 2))
    a("s_waitcnt vmcnt(2)")
    for q in range(8):
        a("v_lshlrev_b32 v%d, 16, v%d" % (XF + 2 * q, XL + q))
        a("v_and_b32 v%d, 0xffff0000, v%d" % (XF + 2 * q + 1, XL + q))
    a("s_waitcnt vmcnt(0)")
    and_or_tree(a, range(DL, DL + 8), T + 3, T + 4, True)
    a("v_and_b32 v%d, 1, v%d" % (T + 3, T + 3))
    a("v_cmp_eq_u32 vcc, 0, v%d" % (T + 3))
    poll_exit(a, "F_POLL", None)
    stamp(a, "D loaded")
    stamp_val(a, "s27", "pollsD")
    for it in range(2):
        for ih in range(2):
            a("ds_write2st64_b32 v%d, v%d, v%d offset0:%d offset1:%d" % (246, DL + 4 * it + 2 * ih, DL + 4 * it + 2 * ih + 1, 16 * ih + 4 * it, 16 * ih + 8 + 4 * it))
    a("s_waitcnt lgkmcnt(0)")
    a("s_barrier")
    for t in range(2):
        a("ds_read_b128 %s, v250 offset:%d" % (vr(DL + 4 * t, 4), t * 1024))
    for t in range(2):
        a("s_waitcnt lgkmcnt(%d)" % (1 - t))
        a("v_mfma_f32_32x32x16_f16 %s, %s, %s, %s" % (vr(TR, 16), vr(DL + 4 * t, 4), vr(GAr + 4 * t, 4), "0" if t == 0 else vr(TR, 16)))
        a("v_mfma_f32_32x32x16_f16 %s, %s, %s, %s" % (vr(TI, 16), vr(DL + 4 * t, 4), vr(GAi + 4 * t, 4), "0" if t == 0 else vr(TI, 16)))
    valu = []
    for t in range(4):
        for p in range(4):
            r = 4 * t + p
            valu.append("v_cvt_pk_f16_f32 v%d, v%d, v%d" % (TI + r, TR + r, TI + r))
        ops = [cmul_ops(OP + 4 * t + p, TI + 4 * t + p, TW5 + 4 * t + p) for p in range(4)]
        valu += [o[0] for o in ops] + [o[1] for o in ops]
    DO = 144
    mfs = [(12 * (t + 1) + 2, "v_mfma_f32_32x32x16_f16 %s, %s, %s, %s" % (vr(DO, 16), vr(OP + 4 * t, 4), vr(GB + 4 * t, 4), "0" if t == 0 else vr(DO, 16))) for t in range(4)]
    interleave(a, valu, mfs)
    for r in range(16):
        a("v_fmac_f32 v%d, s15, v%d" % (XF + r, DO + r))
    for q in range(8):
        a("v_cvt_pk_bf16_f32 v%d, v%d, v%d" % (OP + q, XF + 2 * q, XF + 2 * q + 1))
    for u in range(2):
        a("buffer_store_dwordx4 %s, v%d, s[44:47], s26 offen offset:%d" % (vr(OP + 4 * u, 4), T, 16 * u))
    stamp(a, "out issued")
    if STAMPS:
        a("s_waitcnt vmcnt(0)")
    stamp(a, "out done")
    stamp_dump(a, _nst[0], 180)
    if STAMPS:
        a("s_cmp_lg_u32 s2, 37")
        a.branch("s_cbranch_scc1 L_END")
        a("s_cmp_lg_u32 s3, 0")
        a.branch("s_cbranch_scc1 L_END")
        srd(a, 44, 42, 256)
        sel = [1, 2, 4, 6, 7, 9, 10, 12, 13, 16, 20, 24, 25, 26, 28, 29]
        for k, i in enumerate(sel):
            a("s_sub_u32 s48, s%d, s50" % (50 + i))
            a("v_writelane_b32 v182, s48, %d" % k)
        a("s_mov_b64 exec, 0xffff")
        a("buffer_store_dword v182, v181, s[44:47], 0 offen")
    a.label("L_END")
    a("s_endpgm")


def main(out):
    a = Asm()
    a.raw("; @launch grid=(256,1,1) block=(512,1,1) lds=%d" % LDS_BYTES)
    a.raw('.amdgcn_target "amdgcn-amd-amdhsa--gfx950"')
    a.raw(".text")
    gen(a)
    a.raw('.section .rodata,"a"')
    a.raw(".p2align 6")
    a.raw(""".amdhsa_kernel %s
  .amdhsa_next_free_vgpr 256
  .amdhsa_next_free_sgpr %d
  .amdhsa_accum_offset 256
  .amdhsa_group_segment_fixed_size 0
  .amdhsa_kernarg_size 72
  .amdhsa_user_sgpr_count 2
  .amdhsa_user_sgpr_kernarg_segment_ptr 1
  .amdhsa_system_sgpr_workgroup_id_x 1
.end_amdhsa_kernel""" % (KNAME, 100 if STAMPS else 64))
    open(out, "w").write(a.text())
    print("instructions:", a.count, "nop states:", a.nops, "lds", LDS_BYTES)


if __name__ == "__main__":
    for arg in sys.argv[2:]:
        if arg == "stamps":
            STAMPS = True
        elif "=" in arg:
            k, v = arg.split("=")
            P[k] = int(v)
    main(sys.argv[1])
```

```python
import sys
from asmlib import Asm, vr, sr, hexf, f2u

KNAME = "interleave_layers__spectral_gfnet__spectral_gfnet__prompt_kernel"
MB = 1 << 20
NBUF = 0
WBUF = 4 * MB
DBUF = 12 * MB
PART = 16 * MB
AVEC = 19 * MB
FN = AVEC + 3 * 65536
FW = FN + 65536
EPOCH = FW + 65536
WS_BYTES = 268435456
XBYTES = 4194304
WBYTES = 2048 * 513 * 2
EPS = 1e-5
SPIN_MAX = 20000

P = dict(DN=24, DPN=8, DW=20, DB=20, DWB=0, WB0=1, BST=1, HPRIO=0, D1=14, D2=12, D5=12, NT=1, TLB=0, OUTF=0)
STAMPS = False
STAMP_BASE = 20 * MB

L_FR = 0
L_FI = 4096
L_CS = 8192
L_TW0 = 12288
L_TW = 16384
L_QT = 20480
L_MISC = 24576
BS = 1216
WST = 16 * BS
L_WSB = L_MISC + 256
L_WSA = L_WSB + WST
L_ROW = L_WSA + WST
CS = 3 * 4096 + 64
L_PQ = [L_ROW + 16512, L_WSA]
assert L_WSA + 2 * CS <= L_ROW + 16512
L_X = L_PQ[0] + 2 * CS
L_E = L_X + 16384
L_STASH = L_E + 8192
LDS_BYTES = L_STASH + 32768
assert LDS_BYTES <= 163840, LDS_BYTES
L_SIGT = L_TW0
LF_E = L_MISC + 0
LF_W = L_MISC + 4
LF_B = L_MISC + 8
LF_PQ = L_MISC + 12
LF_H1 = L_MISC + 16
LF_PS = L_MISC + 20
LF_BS = L_MISC + 24
LF_DS = L_MISC + 28
LF_X = L_MISC + 32
LF_EN = L_MISC + 48
LF_R = L_MISC + 64
LF_NA = L_MISC + 68
LF_WS = L_MISC + 72
LF_WA = L_MISC + 76
LF_WSB = L_MISC + 80
LF_T = L_MISC + 84
LF_LD = L_MISC + 88
LF_L = L_MISC + 92
LF_C = L_MISC + 96
LF_FN = L_MISC + 100
L_INV = L_MISC + 128
L_EXP = L_MISC + 160

VT, VL, VNU, VH = 240, 241, 242, 243
V16 = 244

_nst = [0]


def stamp(a, name=""):
    if P.get("DIAG", -1) >= 0 and not STAMPS:
        n = _nst[0]
        _nst[0] += 1
        if n == P["DIAG"]:
            a("s_memrealtime s[48:49]")
            a("s_waitcnt lgkmcnt(0)")
            a("s_mov_b32 s52, s48 ; diag %d %s" % (n, name))
        return
    if not STAMPS:
        return
    n = _nst[0]
    _nst[0] += 1
    a("s_memrealtime s[48:49]")
    a("s_waitcnt lgkmcnt(0)")
    a("s_mov_b32 s%d, s48 ; stamp %d %s" % (50 + n, n, name))


def stamp_val(a, sreg, name=""):
    if P.get("DIAG", -1) >= 0 and not STAMPS:
        _nst[0] += 1
        return
    if not STAMPS:
        return
    n = _nst[0]
    _nst[0] += 1
    a("s_mov_b32 s%d, %s ; stampval %d %s" % (50 + n, sreg, n, name))


def stamp_dump(a, n, vtmp):
    if not STAMPS:
        return
    for i in range(n):
        a("v_writelane_b32 v%d, s%d, %d" % (vtmp, 50 + i, i))
    a("v_lshlrev_b32 v%d, 2, v%d" % (vtmp + 1, VL))
    a("s_lshl_b32 s48, s2, 3")
    a("s_add_u32 s48, s48, s3")
    a("s_lshl_b32 s48, s48, 8")
    a("s_add_u32 s48, s48, 0x%x" % STAMP_BASE)
    a("buffer_store_dword v%d, v%d, s[8:11], s48 offen" % (vtmp, vtmp + 1))


def srd(a, sbase, sptr, nbytes):
    a("s_mov_b32 s%d, s%d" % (sbase, sptr))
    a("s_and_b32 s%d, s%d, 0xffff" % (sbase + 1, sptr + 1))
    a("s_mov_b32 s%d, 0x%x" % (sbase + 2, nbytes))
    a("s_mov_b32 s%d, 0x00020000" % (sbase + 3))


def cmul_ops(dst, x, w):
    return ["v_pk_mul_f16 v%d, v%d, v%d op_sel:[0,0] op_sel_hi:[1,0]" % (dst, x, w),
            "v_pk_fma_f16 v%d, v%d, v%d, v%d op_sel:[1,1,0] op_sel_hi:[0,1,1] neg_lo:[1,0,0]" % (dst, x, w, dst)]


def wave_allreduce_ops(op, r, t):
    o = []
    for ctl in ("quad_perm:[1,0,3,2]", "quad_perm:[2,3,0,1]", "row_half_mirror", "row_mirror"):
        o.append("%s_dpp v%d, v%d, v%d %s row_mask:0xf bank_mask:0xf" % (op, r, r, r, ctl))
    for sw in ("v_permlane16_swap_b32", "v_permlane32_swap_b32"):
        o.append("v_mov_b32 v%d, v%d" % (t, r))
        o.append("%s v%d, v%d" % (sw, r, t))
        o.append("%s v%d, v%d, v%d" % (op, r, r, t))
    return o


def zipper(a, main, filler, ratio=1):
    fi = 0
    for m in main:
        a(m)
        for _ in range(ratio):
            if fi < len(filler):
                a(filler[fi])
                fi += 1
    return filler[fi:]


def interleave(a, valu, mfmas):
    mi = 0
    for i, v in enumerate(valu):
        while mi < len(mfmas) and mfmas[mi][0] <= i:
            a(mfmas[mi][1])
            mi += 1
        a(v)
    while mi < len(mfmas):
        a(mfmas[mi][1])
        mi += 1


def and_or_tree(a, regs, t0, t1, use_and):
    bop = "0x80" if use_and else "0xfe"
    op2 = "v_and_b32" if use_and else "v_or_b32"
    regs = list(regs)
    if len(regs) == 4:
        a("v_bitop3_b32 v%d, v%d, v%d, v%d bitop3:%s" % (t0, regs[0], regs[1], regs[2], bop))
        a("%s v%d, v%d, v%d" % (op2, t0, t0, regs[3]))
        return
    a("v_bitop3_b32 v%d, v%d, v%d, v%d bitop3:%s" % (t0, regs[0], regs[1], regs[2], bop))
    a("v_bitop3_b32 v%d, v%d, v%d, v%d bitop3:%s" % (t1, regs[3], regs[4], regs[5], bop))
    rest = regs[6:]
    tt = [t0, t1]
    k = 0
    while len(rest) >= 2:
        a("v_bitop3_b32 v%d, v%d, v%d, v%d bitop3:%s" % (tt[k], tt[k], rest[0], rest[1], bop))
        rest = rest[2:]
        k ^= 1
    assert not rest
    a("%s v%d, v%d, v%d" % (op2, t0, t0, t1))


def lds_wait(a, tag, vaddr, vtmp, off, cmp_ge_val, sres, sleep=1):
    a("s_mov_b32 s27, 0")
    a.label("LW_%s" % tag)
    a("ds_read_b32 v%d, v%d offset:%d" % (vtmp, vaddr, off))
    a("s_add_u32 s27, s27, 1")
    a("s_waitcnt lgkmcnt(0)")
    a("v_readfirstlane_b32 %s, v%d" % (sres, vtmp))
    a("s_cmp_gt_u32 s27, 0x%x" % (SPIN_MAX * 40))
    a.branch("s_cbranch_scc1 LWX_%s" % tag)
    a("s_cmp_ge_u32 %s, %d" % (sres, cmp_ge_val))
    a.branch("s_cbranch_scc1 LWX_%s" % tag)
    if sleep:
        a("s_sleep %d" % sleep)
    a.branch("s_branch LW_%s" % tag)
    a.label("LWX_%s" % tag)


def w_unit(a, W, ty, PF, PK, T, vst, hf=0):
    MX = T + 4
    ops = []
    first = True
    for c in range(2):
        b1, b2 = W + 8 * c, W + 8 * c + 4
        for b in (b1, b2):
            ops.append("v_perm_b32 v%d, v%d, v%d, s14" % (b, b + 1, b))
            ops.append("v_perm_b32 v%d, v%d, v%d, s14" % (b + 1, b + 2, b + 1))
        for d in range(2):
            ops.append("v_lshlrev_b32 v%d, 16, v%d" % (T, b1 + d))
            ops.append("v_and_b32 v%d, 0xffff0000, v%d" % (T + 1, b1 + d))
            ops.append("v_lshlrev_b32 v%d, 16, v%d" % (T + 2, b2 + d))
            ops.append("v_and_b32 v%d, 0xffff0000, v%d" % (T + 3, b2 + d))
            for u in range(2):
                base = PF + (2 * d + u) * 4
                ops.append("v_add_f32 v%d, v%d, v%d" % (base + c, T + u, T + 2 + u))
                ops.append("v_sub_f32 v%d, v%d, v%d" % (base + 2 + c, T + u, T + 2 + u))
                if first:
                    ops.append("v_max_f32 v%d, |v%d|, |v%d|" % (MX, base + c, base + 2 + c))
                    first = False
                else:
                    ops.append("v_max3_f32 v%d, |v%d|, |v%d|, v%d" % (MX, base + c, base + 2 + c, MX))
    ops += wave_allreduce_ops("v_max_f32", MX, T + 5)
    ops.append("v_lshrrev_b32 v%d, 23, v%d" % (MX, MX))
    ops.append("v_add_u32 v%d, 2, v%d" % (MX, MX))
    ops.append("v_max_u32 v%d, 0x61, v%d" % (MX, MX))
    ops.append("v_min_u32 v%d, 0xdc, v%d" % (MX, MX))
    ops.append("v_sub_u32 v%d, 0xfe, v%d" % (T + 5, MX))
    ops.append("v_lshlrev_b32 v%d, 23, v%d" % (T + 5, T + 5))
    ops.append("ds_write_b32 v%d, v%d offset:%d" % (T + 6, MX, L_EXP + 32 * ty + 16 * hf))
    for e4 in range(4):
        base = PF + e4 * 4
        o = PK + 2 * e4
        ops.append("v_fma_mixlo_f16 v%d, v%d, v%d, 0" % (o, base, T + 5))
        ops.append("v_fma_mixlo_f16 v%d, v%d, v%d, 0" % (o + 1, base + 2, T + 5))
        ops.append("v_fma_mixhi_f16 v%d, v%d, v%d, 0" % (o, base + 1, T + 5))
        ops.append("v_fma_mixhi_f16 v%d, v%d, v%d, 0" % (o + 1, base + 3, T + 5))
    for e4 in range(4):
        ops.append("ds_write_b64 v%d, %s offset:%d" % (vst, vr(PK + 2 * e4, 2), (L_WSA, L_WSB)[ty] + e4 * 32 + hf * 8 * BS))
    return ops


def publish(a, tag, vz, one, t, stag):
    one_lane(a, "ds_add_rtn_u32 v%d, v%d, v%d offset:%d" % (t, vz, one, LF_NA))
    a("v_and_b32 v%d, 16, v%d" % (t + 1, V16))
    a("v_lshlrev_b32 v%d, 1, v%d" % (t + 2, t + 1))
    a("ds_read_b128 %s, v%d offset:%d" % (vr(t + 4, 4), t + 1, L_INV))
    a("ds_read_b128 %s, v%d offset:%d" % (vr(t + 8, 4), t + 2, L_EXP))
    a("ds_read_b128 %s, v%d offset:%d" % (vr(t + 12, 4), t + 2, L_EXP + 16))
    a("s_waitcnt lgkmcnt(3)")
    a("v_readfirstlane_b32 s16, v%d" % t)
    a("s_cmp_lg_u32 s16, 7")
    a.branch("s_cbranch_scc1 %s" % tag)
    a("v_lshrrev_b32 v%d, 1, v%d" % (t + 3, VL))
    a("v_lshl_add_u32 v%d, v%d, 13, v%d" % (t + 1, t + 3, t + 1))
    a("v_lshlrev_b32 v%d, 12, v%d" % (t + 2, VL))
    a("s_lshl_b32 s16, s2, 5")
    a("s_add_u32 s16, s16, 0x%x" % FN)
    a("s_lshl_b32 s17, s2, 4")
    a("s_add_u32 s17, s17, 0x%x" % FW)
    a("s_waitcnt lgkmcnt(0)")
    a("v_cvt_pk_bf16_f32 v%d, v%d, v%d" % (t + 4, t + 4, t + 5))
    a("v_cvt_pk_bf16_f32 v%d, v%d, v%d" % (t + 6, t + 6, t + 7))
    a("v_mov_b32 v%d, %s" % (t + 5, stag))
    a("v_mov_b32 v%d, %s" % (t + 7, stag))
    a("v_max3_u32 v%d, v%d, v%d, v%d" % (t + 3, t + 8, t + 9, t + 10))
    a("v_max3_u32 v%d, v%d, v%d, v%d" % (t, t + 11, t + 12, t + 13))
    a("v_max3_u32 v%d, v%d, v%d, v%d" % (t + 3, t + 3, t + 14, t + 15))
    a("v_max_u32 v%d, v%d, v%d" % (t + 3, t + 3, t))
    a("v_max_u32_dpp v%d, v%d, v%d quad_perm:[1,0,3,2] row_mask:0xf bank_mask:0xf" % (t + 3, t + 3, t + 3))
    a("v_and_b32 v%d, 0xffffff00, v%d" % (t, t + 5))
    for hf in range(2):
        b = t + 8 + 4 * hf
        a("v_lshl_or_b32 v%d, v%d, 8, v%d" % (b, b + 1, b))
        a("v_lshl_or_b32 v%d, v%d, 16, v%d" % (b, b + 2, b))
        a("v_lshl_or_b32 v%d, v%d, 24, v%d" % (b, b + 3, b))
    a("v_mov_b32 v%d, v%d" % (t + 10, t + 12))
    a("v_mov_b32 v%d, %s" % (t + 9, stag))
    a("v_or_b32 v%d, v%d, v%d" % (t + 11, t, t + 3))
    a("s_mov_b64 exec, 0xffff")
    a("buffer_store_dwordx4 %s, v%d, s[8:11], s17 offen sc1" % (vr(t + 8, 4), t + 2))
    a("buffer_store_dwordx4 %s, v%d, s[8:11], s16 offen sc1" % (vr(t + 4, 4), t + 1))
    a("s_mov_b64 exec, -1")
    a.label(tag)
    a("s_waitcnt lgkmcnt(0)")


def poll_exit(a, tag, again_branch, sleep=0):
    a("s_add_u32 s27, s27, 1")
    a("s_cmp_gt_u32 s27, %d" % SPIN_MAX)
    a.branch("s_cbranch_scc1 %sX" % tag)
    if sleep:
        a.branch("s_cbranch_vccz %sX" % tag)
        a("s_sleep %d" % sleep)
        a.branch("s_branch %s" % tag)
    else:
        a.branch("s_cbranch_vccnz %s" % tag)
    a.label("%sX" % tag)


def lds_spec(a, tag, vz, vtmp, flag_off, ge, reads, vflagaddr=None):
    a("s_mov_b32 s27, 0")
    a.label("LS_%s" % tag)
    a("ds_read_b32 v%d, v%d offset:%d" % (vtmp, vz if vflagaddr is None else vflagaddr, flag_off))
    for r in reads:
        a(r)
    a("s_add_u32 s27, s27, 1")
    a("s_waitcnt lgkmcnt(%d)" % min(len(reads), 15))
    a("v_readfirstlane_b32 s16, v%d" % vtmp)
    a("s_cmp_gt_u32 s27, 0x%x" % (SPIN_MAX * 40))
    a.branch("s_cbranch_scc1 LSX_%s" % tag)
    a("s_cmp_ge_u32 s16, %d" % ge)
    a.branch("s_cbranch_scc0 LS_%s" % tag)
    a.label("LSX_%s" % tag)


def one_lane(a, text):
    a("s_mov_b64 exec, 1")
    a(text)
    a("s_mov_b64 exec, -1")


def gen(a):
    a.raw(".globl %s" % KNAME)
    a.raw(".p2align 8")
    a.raw(".type %s,@function" % KNAME)
    a.raw("%s:" % KNAME)
    a("s_cmp_ge_u32 s2, 256")
    a.branch("s_cbranch_scc1 L_END")
    if P.get("DIAG", -1) >= 0:
        a("s_memrealtime s[50:51]")
    a("s_load_dwordx16 s[28:43], s[0:1], 0")
    a("s_load_dwordx2 s[8:9], s[0:1], 64")
    a("v_readfirstlane_b32 s3, v0")
    a("s_bfe_u32 s16, s2, 0x30004")
    a("s_lshl_b32 s16, s16, 19")
    a("s_and_b32 s17, s2, 15")
    a("s_lshl_b32 s17, s17, 13")
    a("s_add_u32 s16, s16, s17")
    a("s_lshr_b32 s17, s2, 7")
    a("s_add_u32 s17, s17, 1")
    a("s_lshl_b32 s17, s17, 11")
    a("s_add_u32 s16, s16, s17")
    a("s_lshl_b32 s17, s3, 11")
    a("s_add_u32 s17, s17, s16")
    a("v_and_b32 v%d, 31, v0" % VNU)
    a("v_and_b32 v5, 32, v0")
    a("v_lshl_add_u32 v4, v%d, 6, v5" % VNU)
    a("v_add_u32 v5, s17, v4")
    XL = 8
    a("s_cmp_ge_u32 s3, 256")
    a.branch("s_cbranch_scc1 L_NOX")
    a("s_waitcnt lgkmcnt(0)")
    for e in range(2):
        for t in range(2):
            a("global_load_dwordx4 %s, v5, s[28:29] offset:%d" % (vr(XL + 8 * e + 4 * t, 4), -2048 + 4096 * e + 16 * t))
    a("s_getpc_b64 s[6:7]")
    a.raw("L_PC:")
    a("s_lshr_b32 s17, s2, 3")
    a("s_lshl_b32 s17, s17, 10")
    a("s_lshl_b32 s18, s3, 2")
    a("s_add_u32 s17, s17, s18")
    a("v_and_b32 v1, 1, v0")
    a("v_lshl_add_u32 v1, v1, 7, s17")
    a("v_min_u32 v1, L_END-L_PC, v1")
    a("global_load_dword v234, v1, s[6:7]")
    a("v_mov_b32 v232, 0")
    a("v_mov_b32 v233, 0")
    a("s_barrier")
    a.branch("s_branch L_COMMON")
    a.label("L_NOX")
    if P["HPRIO"]:
        a("s_setprio %d" % P["HPRIO"])
    WA, WB = 160, 192
    nt = " nt" if P["NT"] else ""
    a("s_and_b32 s17, s2, 31")
    a("s_lshr_b32 s18, s2, 5")
    a("s_lshl_b32 s18, s18, 7")
    a("s_add_u32 s17, s17, s18")
    a("s_mul_i32 s17, s17, 1026")
    a("s_and_b32 s17, s17, 0xfffffffc")
    a("s_mul_i32 s18, s3, 513")
    a("s_add_u32 s17, s17, s18")
    a("s_sub_u32 s17, s17, %d" % (4 * 32832))
    a("v_and_b32 v5, 63, v0")
    a("v_lshl_add_u32 v232, v5, 3, s17")
    a("v_add_u32 v233, %d, v232" % (1024 * 1026))

    def w_loads(base, p_re, p_im):
        for hf in range(2):
            for c, sp in enumerate((p_re, p_im)):
                for rw in range(2):
                    a("global_load_dwordx3 %s, v%d, s[%d:%d] offset:%d%s" % (vr(base + 16 * hf + 8 * c + 4 * rw, 3), 232 + rw, sp, sp + 1, 512 * hf, nt))

    for q in range(4):
        a("v_mov_b32 v%d, 0" % (236 + q))
    a("v_lshlrev_b32 v6, 1, v5")
    a("v_and_b32 v6, 0x78, v6")
    a("ds_write_b64 v6, v[236:237] offset:%d" % L_MISC)
    a("s_waitcnt lgkmcnt(0)")
    a("s_barrier")
    w_loads(WA, 30, 32)
    if P["WB0"]:
        w_loads(WB, 36, 38)
    a("s_mov_b32 s15, s17")
    a.label("L_COMMON")
    a("s_add_u32 s4, s8, 0x%x" % EPOCH)
    a("s_addc_u32 s5, s9, 0")
    a("s_load_dword s34, s[4:5], 0")
    stamp(a, "start")
    a("s_lshr_b32 s3, s3, 6")
    a("v_mov_b32 v%d, v0" % VT)
    a("v_and_b32 v%d, 63, v0" % VL)
    a("v_bfe_u32 v%d, v0, 5, 1" % VH)
    a("v_lshlrev_b32 v%d, 4, v%d" % (V16, VL))
    a("s_and_b32 s12, s3, 3")
    a("s_lshr_b32 s13, s3, 2")
    a("s_lshl_b32 s17, s12, 17")
    a("s_lshl_b32 s18, s13, 12")
    a("s_add_u32 s26, s16, s17")
    a("s_add_u32 s26, s26, s18")
    a("s_sub_u32 s26, s26, 2048")
    a("s_mov_b32 s10, 0x%x" % WS_BYTES)
    a("s_mov_b32 s11, 0x00020000")
    ZR = 236
    for q in range(4):
        a("v_mov_b32 v%d, 0" % (ZR + q))
    a("v_lshlrev_b32 v5, 3, v%d" % VL)
    if P["TLB"]:
        a("s_cmp_ge_u32 s3, 4")
        a.branch("s_cbranch_scc1 L_NOTLB")
        a("v_lshlrev_b32 v1, %d, v%d" % (P["TLB"], VL))
        a("s_waitcnt lgkmcnt(0)")
        a("s_mov_b32 s44, s8")
        a("s_mov_b32 s45, s9")
        a("s_mov_b32 s46, 0x%x" % (20 * MB))
        a("s_mov_b32 s47, 0x00020000")
        for k, (sp, nb) in enumerate(((36, WBYTES), (38, WBYTES), (40, XBYTES))):
            a("s_cmp_eq_u32 s3, %d" % (k + 1))
            a("s_cselect_b32 s44, s%d, s44" % sp)
            a("s_cselect_b32 s45, s%d, s45" % (sp + 1))
            a("s_cselect_b32 s46, 0x%x, s46" % nb)
        a("buffer_load_dword v234, v1, s[44:47], 0 offen")
        a.label("L_NOTLB")
    T = 88
    MEAN = 235
    VRR, VRW = 246, 250
    a("v_and_b32 v%d, 1, v0" % VRR)
    a("v_mul_u32_u24 v%d, %d, v%d" % (VRR, 8192 + 64, VRR))
    a("v_lshrrev_b32 v%d, 1, v0" % (T + 4))
    a("v_lshl_add_u32 v%d, v%d, 2, v%d" % (VRR, T + 4, VRR))
    a("v_add_u32 v%d, %d, v%d" % (VRR, L_ROW, VRR))
    a("s_lshl_b32 s19, s3, 11")
    a("s_lshl_b32 s24, s13, 6")
    a("s_add_u32 s19, s19, s24")
    a("s_add_u32 s19, s19, %d" % L_ROW)
    a("v_add_u32 v%d, s19, v%d" % (VRW, V16))
    a("s_mov_b32 s20, s28")
    a("s_mov_b32 s21, s29")
    a("s_mov_b32 s22, 0x%x" % XBYTES)
    a("s_mov_b32 s23, 0x00020000")
    a("s_lshl_b32 s19, s2, 6")
    a("v_mov_b32 v255, 0")
    a("v_mov_b32 v254, 1")
    a("s_cmp_ge_u32 s3, 4")
    a.branch("s_cbranch_scc1 L_HELPER")
    n_common = _nst[0]
    T = 88
    a("s_lshl_b32 s24, s3, 3")
    a("v_lshl_add_u32 v%d, v%d, 2, s24" % (T + 4, VH))
    a("v_cvt_f32_u32 v%d, v%d" % (T + 4, T + 4))
    a("v_cvt_f32_u32 v%d, v%d" % (T + 6, VNU))
    a("v_cmp_eq_u32 vcc, 0, v%d" % VNU)
    a("v_mov_b32 v%d, 0x42000000" % (T + 7))
    a("v_mul_f32 v%d, %s, v%d" % (T + 8, hexf(1.0 / 32), T + 6))
    a("v_cndmask_b32 v%d, v%d, v%d, vcc" % (T + 7, T + 6, T + 7))
    a("v_mov_b32 v%d, %s" % (MEAN, hexf(1.0 / 32)))
    a("v_cndmask_b32 v%d, 0, v%d, vcc" % (MEAN, MEAN))
    a("v_mul_f32 v%d, %s, v%d" % (T + 7, hexf(1.0 / 1024), T + 7))
    a("v_mul_f32 v%d, %s, v%d" % (T + 9, hexf(1.0 / 1024), T + 6))
    a("v_mul_f32 v%d, %s, v%d" % (T + 10, hexf(1.0 / 2048), T + 6))
    a("s_lshl_b32 s24, s3, 10")
    a("v_add_u32 v6, s24, v%d" % V16)
    a("s_lshr_b32 s24, s3, 1")
    a("s_lshl_b32 s24, s24, 10")
    a("s_and_b32 s25, s3, 1")
    a("s_lshl_b32 s25, s25, 3")
    a("s_add_u32 s24, s24, s25")
    a("v_add_u32 v7, s24, v%d" % V16)
    a("s_mov_b32 s24, %s" % hexf(1.0 / 32))
    A0 = T + 12
    CO, SI_ = A0 + 16, A0 + 32
    O = A0 + 48
    for u in range(4):
        if u:
            a("v_add_f32 v%d, 1.0, v%d" % (T + 4, T + 4))
        a("v_mul_f32 v%d, v%d, v%d" % (A0 + u, T + 4, T + 8))
        a("v_mul_f32 v%d, v%d, v%d" % (A0 + 4 + u, T + 4, T + 7))
        a("v_mul_f32 v%d, v%d, v%d" % (A0 + 8 + u, T + 4, T + 9))
        a("v_fmamk_f32 v%d, v%d, %s, v%d" % (A0 + 12 + u, T + 4, hexf(1.0 / 64), T + 10))
        a("v_fract_f32 v%d, v%d" % (A0 + u, A0 + u))
    for k in range(16):
        a("v_cos_f32 v%d, v%d" % (CO + k, A0 + k))
        a("v_sin_f32 v%d, v%d" % (SI_ + k, A0 + k))
    for u in range(4):
        a("v_cvt_pk_f16_f32 v%d, v%d, v%d" % (O + u, CO + u, SI_ + u))
        a("v_cvt_pk_f16_f32 v%d, -v%d, v%d" % (O + 4 + u, SI_ + u, CO + u))
        a("v_fma_mixlo_f16 v%d, v%d, s24, 0" % (O + 8 + u, CO + 4 + u))
        a("v_fma_mixlo_f16 v%d, v%d, s24, 0" % (O + 12 + u, CO + 8 + u))
        a("v_fma_mixhi_f16 v%d, -v%d, s24, 0" % (O + 8 + u, SI_ + 4 + u))
        a("v_fma_mixhi_f16 v%d, -v%d, s24, 0" % (O + 12 + u, SI_ + 8 + u))
        a("v_cvt_pk_f16_f32 v%d, v%d, -v%d" % (O + 16 + u, CO + 12 + u, SI_ + 12 + u))
    for k in range(2):
        a("v_cvt_pk_bf16_f32 v%d, v%d, v%d" % (O + 20 + k, CO + 2 * k, CO + 2 * k + 1))
        a("v_cvt_pk_bf16_f32 v%d, -v%d, -v%d" % (O + 22 + k, SI_ + 2 * k, SI_ + 2 * k + 1))
    for k, tb in enumerate((L_FR, L_FI, L_TW0, L_TW, L_QT)):
        a("ds_write_b128 v6, %s offset:%d" % (vr(O + 4 * k, 4), tb))
    a("ds_write_b64 v7, %s offset:%d" % (vr(O + 20, 2), L_CS))
    a("ds_write_b64 v7, %s offset:%d" % (vr(O + 22, 2), L_CS + 2048))
    one_lane(a, "ds_add_u32 v255, v254 offset:%d" % LF_T)
    ID, C1, S1, TW0, M2 = 24, 32, 40, 48, 64
    T = 216
    a("v_lshrrev_b32 v%d, 1, v%d" % (T + 4, VNU))
    a("v_lshlrev_b32 v%d, 3, v%d" % (T + 5, VH))
    a("v_sub_u32 v%d, v%d, v%d" % (T + 4, T + 4, T + 5))
    a("v_and_b32 v%d, 1, v%d" % (T + 5, VNU))
    a("v_lshlrev_b32 v%d, 4, v%d" % (T + 6, T + 5))
    a("v_mov_b32 v%d, 0x3f80" % (T + 7))
    a("v_lshlrev_b32 v%d, v%d, v%d" % (T + 7, T + 6, T + 7))
    for k in range(8):
        a("v_cmp_eq_u32 vcc, %d, v%d" % (k, T + 4))
        a("v_cndmask_b32 v%d, 0, v%d, vcc" % (ID + k, T + 7))
    a("v_lshlrev_b32 v7, 12, v%d" % (T + 5))
    a("v_bfe_u32 v%d, v%d, 4, 1" % (T + 4, VNU))
    a("v_lshl_add_u32 v7, v%d, 7, v7" % (T + 4))
    a("v_bfe_u32 v%d, v%d, 2, 1" % (T + 4, VNU))
    a("v_lshl_add_u32 v7, v%d, 6, v7" % (T + 4))
    a("v_bfe_u32 v%d, v%d, 3, 1" % (T + 4, VNU))
    a("v_lshl_add_u32 v7, v%d, 5, v7" % (T + 4))
    a("v_bfe_u32 v%d, v%d, 1, 1" % (T + 4, VNU))
    a("v_lshl_add_u32 v7, v%d, 4, v7" % (T + 4))
    a("v_lshl_add_u32 v7, v%d, 9, v7" % VH)
    VNS = 247
    a("v_lshrrev_b32 v%d, 2, v0" % (T + 4))
    a("v_and_b32 v%d, 48, v%d" % (T + 5, V16))
    a("v_lshl_add_u32 v%d, v%d, 14, v%d" % (VNS, T + 4, T + 5))
    a("s_lshl_b32 s24, s3, 2")
    a("v_mov_b32 v6, s24")
    reads = ["ds_read_b128 %s, v%d offset:%d" % (vr(C1 + 4 * q, 4), V16, L_CS + q * 1024) for q in range(4)]
    reads += ["ds_read_b128 %s, v%d offset:%d" % (vr(TW0 + 4 * q, 4), V16, L_TW0 + q * 1024) for q in range(4)]
    reads += ["ds_read_b128 %s, v7 offset:%d" % (vr(M2 + 4 * q, 4), L_FR + q * 1024) for q in range(4)]
    a("s_waitcnt lgkmcnt(0)")
    a("s_add_u32 s36, s34, 1")
    lds_spec(a, "TAB", 255, T, LF_T, 4, reads)
    stamp(a, "tables")
    D0, TR, TI, OP = [80, 144], [96, 160], [112, 176], [128, 192]
    XA = [208, 8]
    for e in range(2):
        a("s_waitcnt vmcnt(%d)" % (3 - 2 * e + (1 if P["TLB"] else 0)))
        a("v_mfma_f32_32x32x16_bf16 %s, %s, %s, 0" % (vr(D0[e], 16), vr(XL + 8 * e, 4), vr(ID, 4)))
        a("v_mfma_f32_32x32x16_bf16 %s, %s, %s, %s" % (vr(D0[e], 16), vr(XL + 8 * e + 4, 4), vr(ID + 4, 4), vr(D0[e], 16)))
    stamp(a, "x loaded")
    a("s_waitcnt lgkmcnt(0)")
    for e in range(2):
        for q in range(8):
            a("v_cvt_pk_bf16_f32 v%d, v%d, v%d" % (XA[e] + q, D0[e] + 2 * q, D0[e] + 2 * q + 1))
        for t in range(2):
            a("v_mfma_f32_32x32x16_bf16 %s, %s, %s, %s" % (vr(TR[e], 16), vr(XA[e] + 4 * t, 4), vr(C1 + 4 * t, 4), "0" if t == 0 else vr(TR[e], 16)))
        for t in range(2):
            a("v_mfma_f32_32x32x16_bf16 %s, %s, %s, %s" % (vr(TI[e], 16), vr(XA[e] + 4 * t, 4), vr(S1 + 4 * t, 4), "0" if t == 0 else vr(TI[e], 16)))
    SM, SX, E2, AS = [T, T + 1], [T + 2, T + 3], [T + 4, T + 5], [T + 6, T + 7]
    a("v_mov_b32 v%d, %s" % (T + 8, hexf(EPS)))

    def row_stats(e):
        o = []
        o.append("v_add_f32 v%d, v%d, v%d" % (SM[e], TR[e], TR[e] + 1))
        o.append("v_add_f32 v%d, v%d, v%d" % (SX[e], TR[e] + 2, TR[e] + 3))
        for r in range(4, 16, 2):
            o.append("v_add_f32 v%d, v%d, v%d" % (SM[e], SM[e], TR[e] + r))
            o.append("v_add_f32 v%d, v%d, v%d" % (SX[e], SX[e], TR[e] + r + 1))
        o.append("v_add_f32 v%d, v%d, v%d" % (SM[e], SM[e], SX[e]))
        o.append("v_mov_b32 v%d, v%d" % (SX[e], SM[e]))
        en = ["v_mul_f32 v%d, v%d, v%d" % (E2[e], TI[e], TI[e])] + ["v_fmac_f32 v%d, v%d, v%d" % (E2[e], TI[e] + r, TI[e] + r) for r in range(1, 16)]
        o += en[:2]
        o.append("v_permlane32_swap_b32 v%d, v%d" % (SM[e], SX[e]))
        o += en[2:4]
        o.append("v_add_f32 v%d, v%d, v%d" % (SM[e], SM[e], SX[e]))
        o.append("v_mul_f32 v%d, v%d, v%d" % (SM[e], SM[e], MEAN))
        o += en[4:]
        for r in range(16):
            o.append("v_sub_f32 v%d, v%d, v%d" % (TR[e] + r, TR[e] + r, SM[e]))
        for r in range(16):
            if r % 2:
                o.append("v_fmac_f32 v%d, v%d, v%d" % (E2[e], TR[e] + r, TR[e] + r))
            elif r == 0:
                o.append("v_mul_f32 v%d, v%d, v%d" % (SX[e], TR[e], TR[e]))
            else:
                o.append("v_fmac_f32 v%d, v%d, v%d" % (SX[e], TR[e] + r, TR[e] + r))
        o.append("v_add_f32 v%d, v%d, v%d" % (E2[e], E2[e], SX[e]))
        return o

    def row_red(e):
        o = wave_allreduce_ops("v_add_f32", E2[e], SX[e])
        o.append("v_fmamk_f32 v%d, v%d, %s, v%d" % (E2[e], E2[e], hexf(2.0 ** -15), T + 8))
        o.append("v_rsq_f32 v%d, v%d" % (AS[e], E2[e]))
        return o

    def row_tw(e):
        valu = []
        for t in range(4):
            for p in range(4):
                r = 4 * t + p
                valu.append("v_fma_mixlo_f16 v%d, v%d, v%d, 0" % (TR[e] + r, TR[e] + r, AS[e]))
            for p in range(4):
                r = 4 * t + p
                valu.append("v_fma_mixhi_f16 v%d, v%d, v%d, 0" % (TR[e] + r, TI[e] + r, AS[e]))
            ops = [cmul_ops(OP[e] + 4 * t + p, TR[e] + 4 * t + p, TW0 + 4 * t + p) for p in range(4)]
            valu += [x[0] for x in ops] + [x[1] for x in ops]
        out = []
        for idx, v in enumerate(valu):
            if idx >= 18 and (idx - 18) % 16 == 0:
                t = (idx - 18) // 16
                out.append("v_mfma_f32_32x32x16_f16 %s, %s, %s, %s" % (vr(D0[e], 16), vr(M2 + 4 * t, 4), vr(OP[e] + 4 * t, 4), "0" if t == 0 else vr(D0[e], 16)))
            out.append(v)
        last = "v_mfma_f32_32x32x16_f16 %s, %s, %s, %s" % (vr(D0[e], 16), vr(M2 + 12, 4), vr(OP[e] + 12, 4), vr(D0[e], 16))
        return out, last

    def row_out(e):
        o = ["v_mul_f32 v%d, v%d, v%d" % (E2[e], E2[e], AS[e]), "v_mul_f32 v%d, %s, v%d" % (E2[e], hexf(32.0), E2[e]),
             "ds_write_b32 v6, v%d offset:%d" % (E2[e], L_INV + 16 * e)]
        o += ["v_cvt_pk_f16_f32 v%d, v%d, v%d" % (XA[e] + q, D0[e] + 2 * q, D0[e] + 2 * q + 1) for q in range(8)]
        o += ["ds_write_b128 v%d, %s offset:%d" % (VRW, vr(XA[e] + 4 * t, 4), e * (8192 + 64) + t * 1024) for t in range(2)]
        return o

    for o in row_stats(0):
        a(o)
    rest = zipper(a, row_red(0), row_stats(1), 2)
    for o in rest:
        a(o)
    tw0, last0 = row_tw(0)
    rest = zipper(a, row_red(1), tw0, 2)
    for o in rest:
        a(o)
    tw1, last1 = row_tw(1)
    for o in tw1[:2]:
        a(o)
    a(last0)
    for o in tw1[2:16]:
        a(o)
    rest = zipper(a, row_out(0), tw1[16:], 1)
    for o in rest:
        a(o)
    a(last1)
    for o in row_out(1):
        a(o)
    one_lane(a, "ds_add_u32 v255, v254 offset:%d" % LF_R)
    stamp(a, "row done")
    R0 = 80
    reads = []
    for it in range(4):
        for ih in range(2):
            reads.append("ds_read2st64_b32 %s, v%d offset0:%d offset1:%d" % (vr(R0 + 4 * it + 2 * ih, 2), VRR, 16 * ih + 2 * it, 16 * ih + 8 + 2 * it))
    lds_spec(a, "ROWS", 255, T, LF_R, 4, reads)
    if P["WB0"] == 2:
        lds_wait(a, "CLD", 255, T, LF_LD, 4, "s16")
    for it in range(4):
        a("s_waitcnt lgkmcnt(%d)" % (6 - 2 * it))
        a("s_add_u32 s25, s19, 0x%x" % (it * 64 * 16384))
        a("buffer_store_dwordx4 %s, v%d, s[8:11], s25 offen sc1" % (vr(R0 + 4 * it, 4), VNS))
    stamp(a, "N issued")
    SR, SI = 0, 16
    DAr, DAi, DBr, DBi = 32, 48, 64, 80
    OP, OQ = 96, 112
    TW, FR, FI = 128, 144, 160
    PP = [176, 208]
    VX, VY, VE, VF, VPS, VAL = 245, 247, 248, 249, 251, 252
    T0 = 253
    VZ = 255
    a("s_and_b32 s12, s3, 1")
    a("s_lshr_b32 s13, s3, 1")
    a("s_lshl_b32 s14, s2, 1")
    a("s_add_u32 s14, s14, s13")
    for q in range(4):
        a("ds_read_b128 %s, v%d offset:%d" % (vr(FR + 4 * q, 4), V16, L_FR + q * 1024))
        a("ds_read_b128 %s, v%d offset:%d" % (vr(FI + 4 * q, 4), V16, L_FI + q * 1024))
        a("ds_read_b128 %s, v%d offset:%d" % (vr(TW + 4 * q, 4), V16, L_TW + q * 1024))
    a("v_lshrrev_b32 v%d, 1, v%d" % (T0, VL))
    a("s_lshl_b32 s15, s12, 7")
    a("v_add_u32 v%d, s15, v%d" % (T0, T0))
    a("v_and_b32 v%d, 16, v%d" % (T0 + 1, V16))
    a("s_lshl_b32 s15, s13, 5")
    a("v_add_u32 v%d, s15, v%d" % (T0 + 1, T0 + 1))
    a("v_lshl_add_u32 v%d, v%d, 6, v%d" % (T0, T0, T0 + 1))
    for (vreg, x, sh, base) in ((VX, 0, 12, L_X), (VY, 1, 12, L_X), (VE, 0, 11, L_E), (VF, 2, 11, L_E)):
        a("s_xor_b32 s16, s3, %d" % x)
        a("s_lshl_b32 s16, s16, %d" % sh)
        a("s_add_u32 s16, s16, %d" % base)
        a("v_add_u32 v%d, s16, v%d" % (vreg, V16))
    a("s_lshl_b32 s16, s12, 1")
    a("s_add_u32 s16, s16, s13")
    a("s_lshl_b32 s16, s16, 4")
    a("v_lshrrev_b32 v%d, 2, v%d" % (VPS, VL))
    a("v_add_u32 v%d, s16, v%d" % (VPS, VPS))
    a("v_and_b32 v%d, 48, v%d" % (VAL, V16))
    a("v_lshl_add_u32 v%d, v%d, 14, v%d" % (VPS, VPS, VAL))
    a("s_lshl_b32 s16, s12, 7")
    a("v_add_u32 v%d, s16, v%d" % (VAL, VL))
    a("v_lshlrev_b32 v%d, 5, v%d" % (VAL, VAL))
    a("s_lshl_b32 s44, s2, 6")
    a("s_add_u32 s44, s44, 0x%x" % PART)
    a("s_and_b32 s45, s2, 7")
    a("s_lshl_b32 s45, s45, 13")
    a("s_lshl_b32 s18, s12, 12")
    a("s_add_u32 s18, s18, s45")
    a("s_add_u32 s18, s18, 0x%x" % FN)
    a("s_add_u32 s45, s45, 0x%x" % AVEC)
    a("s_lshl_b32 s24, s2, 14")
    a("s_add_u32 s17, s24, 4096")
    a("s_mul_i32 s46, s13, %d" % CS)
    a("s_lshl_b32 s47, s12, 12")
    a("s_add_u32 s47, s47, s46")
    a("s_add_u32 s47, s47, 4096")
    a("s_lshl_b32 s28, s3, 2")
    a("s_xor_b32 s29, s28, 4")
    a("s_xor_b32 s30, s28, 8")
    a("v_mov_b32 v%d, 1" % DAr)
    a("s_mov_b32 s37, s17")
    a("s_waitcnt vmcnt(0)")
    publish(a, "C_NOFN", VZ, DAr, DBr, "s36")
    a("s_mov_b32 s17, s37")
    lds_wait(a, "CNA", VZ, T0 + 1, LF_NA, 8, "s15")
    stamp(a, "N acked")
    a("s_mov_b32 s27, 0")
    if P["DN"]:
        a("s_sleep %d" % P["DN"])
    a.label("C_POLLN")
    for g in range(4):
        a("buffer_load_dwordx4 %s, v%d, s[8:11], s18 offen offset:%d sc1" % (vr(OQ + 4 * g, 4), V16, g * 1024))
    a("s_waitcnt vmcnt(0)")
    for k in range(8):
        a("v_xor_b32 v%d, s36, v%d" % (DAr + k, OQ + 2 * k + 1))
    and_or_tree(a, range(DAr, DAr + 8), T0 + 1, DAr + 8, False)
    a("v_cmp_ne_u32 vcc, 0, v%d" % (T0 + 1))
    poll_exit(a, "C_POLLN", None, P["DPN"])
    stamp(a, "FN seen")
    stamp_val(a, "s27", "pollsN")
    for g in range(4):
        a("buffer_load_dwordx4 %s, v%d, s[8:11], s%d offen offset:%d sc1" % (vr(OP + 4 * g, 4), T0, (24, 17)[g // 2], (g % 2) * 2048))
    a("s_lshl_b32 s16, s3, 13")
    a("s_add_u32 s31, s16, %d" % L_STASH)
    a("v_add_u32 v%d, s31, v%d" % (T0, V16))
    for k in range(8):
        a("v_and_b32 v%d, 0xffff0000, v%d" % (OQ + 2 * k + 1, OQ + 2 * k))
        a("v_lshlrev_b32 v%d, 16, v%d" % (OQ + 2 * k, OQ + 2 * k))
    for g in range(4):
        a("ds_write_b128 v%d, %s offset:%d" % (T0, vr(OQ + 4 * g, 4), 4096 + g * 1024))

    def mf(kind, D, opreg, F, t, cinit):
        c = cinit if t == 0 else vr(D, 16)
        if kind == "A":
            return "v_mfma_f32_32x32x16_f16 %s, %s, %s, %s" % (vr(D, 16), vr(opreg + 4 * t, 4), vr(F + 4 * t, 4), c)
        return "v_mfma_f32_32x32x16_f16 %s, %s, %s, %s" % (vr(D, 16), vr(F + 4 * t, 4), vr(opreg + 4 * t, 4), c)

    def stage(kind, Dr, Di, opreg, valu, per, cr="0", ci="0"):
        mfs = []
        for t in range(4):
            rd = per * (t + 1) + 2
            mfs.append((rd, mf(kind, Dr, opreg, FR, t, cr)))
            mfs.append((rd + per // 2, mf(kind, Di, opreg, FI, t, ci)))
        interleave(a, valu, mfs)

    def stage3(Dr, Di, opreg, valu):
        pos = [11, 17, 23, 29, 35, 41, 47, 53]
        mfs = []
        for t in range(4):
            mfs.append((pos[2 * t], mf("A", Dr, opreg, FR, t, "0")))
            mfs.append((pos[2 * t + 1], mf("A", Di, opreg, FI, t, "0")))
        interleave(a, valu, mfs)

    def twiddle_ops(Dr, Di, tmp):
        v = []
        for t in range(4):
            for p in range(4):
                r = 4 * t + p
                v.append("v_cvt_pk_f16_f32 v%d, v%d, v%d" % (tmp + r, Dr + r, Di + r))
            ops = [cmul_ops(OP + 4 * t + p, tmp + 4 * t + p, TW + 4 * t + p) for p in range(4)]
            v += [o[0] for o in ops] + [o[1] for o in ops]
        return v

    for layer in range(4):
        ty = layer % 2
        Pb, Qb = PP[ty], PP[ty] + 16
        a.comment("==== layer %d ====" % layer)
        if layer == 0:
            for t in range(4):
                a("s_waitcnt vmcnt(%d)" % (3 - t))
                a(mf("A", DAr, OP, FR, t, "0"))
                a("ds_write_b128 v%d, %s offset:%d" % (T0, vr(OP + 4 * t, 4), t * 1024))
                for r in range(4 * t, 4 * t + 4):
                    a("v_fma_mix_f32 v%d, v%d, v%d, 0 op_sel_hi:[1,0,0]" % (SR + r, OP + r, OQ + r))
                a(mf("A", DAi, OP, FI, t, "0"))
                for r in range(4 * t, 4 * t + 4):
                    a("v_fma_mix_f32 v%d, -v%d, v%d, 0 op_sel:[1,0,0] op_sel_hi:[1,0,0]" % (SI + r, OP + r, OQ + r))
            stamp(a, "N loaded")
            a("s_waitcnt lgkmcnt(0)")
        else:
            stamp(a, "layer start")
            v = []
            for t in range(4):
                for p in range(4):
                    r = 4 * t + p
                    v.append("v_fma_mixlo_f16 v%d, v%d, |v%d|, 0" % (OP + r, SR + r, DBr + r))
                for p in range(4):
                    r = 4 * t + p
                    v.append("v_fma_mixhi_f16 v%d, v%d, -|v%d|, 0" % (OP + r, SI + r, DBr + r))
            stage("A", DAr, DAi, OP, v, 8)
        if layer == 0:
            pass
        stage("B", DBr, DBi, OP, twiddle_ops(DAr, DAi, OQ), 12)
        a("v_mov_b32 v%d, s28" % T0)
        a("v_mov_b32 v%d, %d" % (T0 + 1, layer + 1))
        for g in range(4):
            for p in range(4):
                r = 4 * g + p
                a("v_cvt_pk_f16_f32 v%d, v%d, v%d" % (OP + r, DBr + r, DBi + r))
            a("ds_write_b128 v%d, %s offset:%d" % (VX, vr(OP + 4 * g, 4), g * 1024))
        a("ds_write_b32 v%d, v%d offset:%d" % (T0, T0 + 1, LF_X))
        own1 = ["v_pk_mul_f16 v%d, v%d, v%d op_sel:[0,0] op_sel_hi:[1,0] neg_hi:[1,0]" % (DBr + r, OP + r, Pb + r) for r in range(16)]
        own2 = ["v_pk_fma_f16 v%d, v%d, v%d, v%d op_sel:[1,1,0] op_sel_hi:[0,1,1] neg_lo:[1,0,0] neg_hi:[1,0,0]" % (DBr + r, OP + r, Pb + r, DBr + r) for r in range(16)]
        if layer < 2:
            a("s_add_u32 s16, s46, %d" % L_PQ[ty])
            a("v_add_u32 v%d, s16, v%d" % (DAr, V16))
            a("s_add_u32 s16, s47, %d" % L_PQ[ty])
            a("v_add_u32 v%d, s16, v%d" % (DAr + 1, V16))
            reads = ["ds_read_b32 v%d, v%d offset:%d" % (DAr + 2, VZ, LF_W)]
            reads += ["ds_read_b128 %s, v%d offset:%d" % (vr(Pb + 4 * g, 4), DAr, g * 1024) for g in range(4)]
            reads += ["ds_read_b128 %s, v%d offset:%d" % (vr(Qb + 4 * g, 4), DAr + 1, g * 1024) for g in range(4)]
            lds_wait(a, "PQ%d" % layer, VZ, T0 + 1, LF_PQ, 4 * (layer + 1), "s16", sleep=1)
            for r_ in reads:
                a(r_)
            if layer == 0:
                a("s_waitcnt lgkmcnt(8)")
                a("v_readfirstlane_b32 s33, v%d" % (DAr + 2))
                a("s_sub_u32 s25, 250, s33")
                a("s_lshl_b32 s25, s25, 23")
            a("s_waitcnt lgkmcnt(4)")
        resc = ["v_mul_f32 v%d, s25, v%d" % (SR + r, SR + r) for r in range(32)] if layer == 0 else []
        for x in own1[:8]:
            a(x)
        a("v_mov_b32 v%d, s29" % T0)
        reads = ["ds_read_b128 %s, v%d offset:%d" % (vr(OQ + 4 * g, 4), VY, g * 1024) for g in range(4)]
        a("ds_read_b32 v%d, v%d offset:%d" % (T0 + 1, T0, LF_X))
        for r_ in reads:
            a(r_)
        for x in own1[8:] + own2:
            a(x)
        for x in resc[:8]:
            a(x)
        a("s_waitcnt lgkmcnt(4)")
        a("v_readfirstlane_b32 s16, v%d" % (T0 + 1))
        a("s_cmp_ge_u32 s16, %d" % (layer + 1))
        a.branch("s_cbranch_scc1 C_XOK_%d" % layer)
        lds_spec(a, "X%d" % layer, VZ, T0 + 1, LF_X, layer + 1, reads, vflagaddr=T0)
        a.label("C_XOK_%d" % layer)
        v = []
        for t in range(4):
            v.append("s_waitcnt lgkmcnt(%d)" % (3 - t))
            for p in range(4):
                r = 4 * t + p
                v.append("v_pk_fma_f16 v%d, v%d, v%d, v%d op_sel:[0,0,0] op_sel_hi:[1,0,1] neg_hi:[1,0,0]" % (DBr + r, OQ + r, Qb + r, DBr + r))
            for p in range(4):
                r = 4 * t + p
                v.append("v_pk_fma_f16 v%d, v%d, v%d, v%d op_sel:[1,1,0] op_sel_hi:[0,1,1] neg_lo:[1,0,0] neg_hi:[1,0,0]" % (DBr + r, OQ + r, Qb + r, DBr + r))
        if layer == 0:
            v += resc[8:]
            stage3(DAr, DAi, DBr, v)
        else:
            stage("A", DAr, DAi, DBr, v, 9)
        stage("B", SR, SI, OP, twiddle_ops(DAr, DAi, OQ), 12, cr=vr(SR, 16), ci=vr(SI, 16))
        if layer == 3:
            break
        a("v_mov_b32 v%d, s28" % T0)
        a("v_mov_b32 v%d, %d" % (T0 + 1, layer + 1))
        a("v_mov_b32 v%d, s30" % DBi)
        a("v_mov_b32 v%d, 1" % (DBi + 2))
        a("s_cmp_lg_u32 s14, 387")
        a.branch("s_cbranch_scc1 CC_REG_%d" % layer)
        for r in range(16):
            a("v_mov_b32 v%d, 0" % (SI + r))
        for r in range(16):
            a("v_mul_f32 v%d, %s, v%d" % (DAi + r, hexf(0.7071067811865476), SR + r))
        for r in range(16):
            a("v_mul_f32 v%d, v%d, v%d" % (DAr + r, DAi + r, DAi + r))
        a("s_cmp_eq_u32 s13, 0")
        a.branch("s_cbranch_scc1 CC_S0_%d" % layer)
        a.branch("s_branch CC_S1_%d" % layer)
        a.label("CC_REG_%d" % layer)
        a("s_cmp_eq_u32 s13, 0")
        a.branch("s_cbranch_scc0 CC_E1_%d" % layer)
        for variant in range(2):
            send = DAr + (8 if variant == 0 else 0)
            keep = DAr + (0 if variant == 0 else 8)
            so = send - DAr
            ko = keep - DAr
            if variant == 1:
                a.label("CC_E1_%d" % layer)
            for r in range(8):
                a("v_mul_f32 v%d, v%d, v%d" % (send + r, SR + so + r, SR + so + r))
            for r in range(8):
                a("v_fmac_f32 v%d, v%d, v%d" % (send + r, SI + so + r, SI + so + r))
            a("ds_write_b128 v%d, %s" % (VE, vr(send, 4)))
            a("ds_write_b128 v%d, %s offset:1024" % (VE, vr(send + 4, 4)))
            a("ds_write_b32 v%d, v%d offset:%d" % (T0, T0 + 1, LF_EN))
            for r in range(8):
                a("v_mul_f32 v%d, v%d, v%d" % (keep + r, SR + ko + r, SR + ko + r))
            for r in range(8):
                a("v_fmac_f32 v%d, v%d, v%d" % (keep + r, SI + ko + r, SI + ko + r))
            a.branch("s_branch CC_R%d_%d" % (variant, layer))
            a.label("CC_S%d_%d" % (variant, layer))
            a("ds_write_b128 v%d, %s" % (VE, vr(send, 4)))
            a("ds_write_b128 v%d, %s offset:1024" % (VE, vr(send + 4, 4)))
            a("ds_write_b32 v%d, v%d offset:%d" % (T0, T0 + 1, LF_EN))
            a.label("CC_R%d_%d" % (variant, layer))
            reads = ["ds_read_b128 %s, v%d" % (vr(DAi, 4), VF), "ds_read_b128 %s, v%d offset:1024" % (vr(DAi + 4, 4), VF)]
            lds_spec(a, "EN%d_%d" % (variant, layer), VZ, DBi + 1, LF_EN, layer + 1, reads, vflagaddr=DBi)
            a("s_waitcnt lgkmcnt(0)")
            for q in range(8):
                a("v_add_f32 v%d, v%d, v%d" % (DAi + q, DAi + q, keep + q))
            if variant == 0:
                a.branch("s_branch CC_E2_%d" % layer)
        a.label("CC_E2_%d" % layer)
        for q in range(4):
            a("v_cvt_pk_bf16_f32 v%d, v%d, v%d" % (DAi + 8 + q, DAi + 2 * q, DAi + 2 * q + 1))
        for q in range(4):
            a("v_or_b32 v%d, 0x80008000, v%d" % (DAi + 8 + q, DAi + 8 + q))
        if layer == 0:
            lds_wait(a, "CBS", VZ, T0, LF_BS, 4, "s16", sleep=0)
        a("buffer_store_dwordx4 %s, v%d, s[8:11], s44 offen sc1" % (vr(DAi + 8, 4), VPS))
        a("s_mov_b64 exec, 1")
        a("ds_add_u32 v%d, v%d offset:%d" % (VZ, DBi + 2, LF_PS))
        a("s_mov_b64 exec, -1")
        a("s_add_u32 s44, s44, 0x100000")
        stamp(a, "part stored")
        if layer == 2:
            a("v_add_u32 v%d, s31, v%d" % (T0 + 1, V16))
            for g in range(4):
                a("ds_read_b128 %s, v%d offset:%d" % (vr(PP[0] + 4 * g, 4), T0 + 1, g * 1024))
                a("ds_read_b128 %s, v%d offset:%d" % (vr(PP[0] + 16 + 4 * g, 4), T0 + 1, 4096 + g * 1024))
            a("s_waitcnt lgkmcnt(0)")
            for r in range(16):
                a("v_mul_f32 v%d, s25, v%d" % (PP[0] + 16 + r, PP[0] + 16 + r))
        lds_wait(a, "CH%d" % layer, VZ, T0, LF_H1, layer + 1, "s16", sleep=1)
        stamp(a, "h1 seen")
        a("s_mov_b32 s27, 0")
        if P["D2"]:
            a("s_sleep %d" % P["D2"])
        a.label("C_POLL2_%d" % layer)
        for g in range(4):
            a("buffer_load_dwordx4 %s, v%d, s[8:11], s45 offen offset:%d sc1" % (vr(DBr + 4 * g, 4), VAL, (g // 2) * 2048 + (g % 2) * 16))
        a("s_waitcnt vmcnt(0)")
        and_or_tree(a, range(DBr, DBr + 16), T0, T0 + 1, True)
        a("v_cmp_le_i32 vcc, 0, v%d" % T0)
        poll_exit(a, "C_POLL2_%d" % layer, None)
        a("s_add_u32 s45, s45, 0x10000")
        a("v_mov_b32 v%d, 1" % T0)
        one_lane(a, "ds_add_u32 v%d, v%d offset:%d" % (VZ, T0, LF_L))
        stamp_val(a, "s27", "polls2")
    NN, IO = PP[0], PP[0] + 16
    a("v_lshrrev_b32 v%d, 2, v%d" % (T0, VL))
    a("s_lshl_b32 s16, s12, 6")
    a("v_add_u32 v%d, s16, v%d" % (T0, T0))
    a("v_and_b32 v%d, 48, v%d" % (T0 + 1, V16))
    a("v_lshl_add_u32 v%d, v%d, 15, v%d" % (T0, T0, T0 + 1))
    a("s_lshl_b32 s16, s14, 6")
    a("s_add_u32 s16, s16, 0x%x" % DBUF)
    a("s_mov_b32 s17, 0x3c003c00")
    a("s_cmp_eq_u32 s14, 387")
    a("s_cselect_b32 s17, 0x00003800, s17")
    a("s_lshl_b32 s15, s33, 23")
    a("v_mov_b32 v%d, 1" % (T0 + 1))
    for g in range(4):
        for p in range(4):
            r = 4 * g + p
            a("v_fma_mixlo_f16 v%d, v%d, -v%d, v%d op_sel_hi:[1,0,0]" % (DAr + r, NN + r, IO + r, SR + r))
        for p in range(4):
            r = 4 * g + p
            a("v_fma_mixhi_f16 v%d, v%d, v%d, v%d op_sel:[1,0,0] op_sel_hi:[1,0,0]" % (DAr + r, NN + r, IO + r, SI + r))
        for p in range(4):
            r = 4 * g + p
            a("v_pk_mul_f16 v%d, v%d, s17" % (DAr + r, DAr + r))
        for p in range(4):
            r = 4 * g + p
            a("v_or_b32 v%d, 1, v%d" % (DAr + r, DAr + r))
        a("buffer_store_dwordx4 %s, v%d, s[8:11], s16 offen sc1" % (vr(DAr + 4 * g, 4), T0))
        if g < 3:
            a("s_add_u32 s16, s16, 0x80000")
    a("s_mov_b64 exec, 1")
    a("ds_add_u32 v%d, v%d offset:%d" % (VZ, T0 + 1, LF_DS))
    a("s_mov_b64 exec, -1")
    stamp(a, "delta stored")
    n_comp = _nst[0]
    a.branch("s_branch L_FINAL")

    a.label("L_HELPER")
    _nst[0] = n_common
    H = 0
    VHT, VQT, VPW, VSG, VSH, VAS, VPL = 245, 247, 251, 252, 253, 254, 31
    VZ = 255
    ONE = 30
    a("v_mov_b32 v%d, 1" % ONE)
    a("v_lshlrev_b32 v%d, 6, v%d" % (VPL, VL))
    WA, WB, WT, PF, PK = 160, 192, 224, 100, 116
    VST, VWR, VWS = 231, 248, 249
    QT, SB = 16, 140
    stamp(a, "tables")
    a("v_and_b32 v%d, 255, v%d" % (H, VT))
    a("v_lshlrev_b32 v%d, 4, v%d" % (VHT, H))
    a("s_lshl_b32 s16, s2, 12")
    a("s_add_u32 s16, s16, 0x%x" % PART)
    a("s_add_u32 s24, s16, 0x%x" % MB)
    a("s_lshl_b32 s25, s12, 16")
    a("s_lshl_b32 s17, s2, 8")
    a("s_add_u32 s25, s25, s17")
    a("s_add_u32 s25, s25, 0x%x" % AVEC)
    a("s_cmp_eq_u32 s3, 7")
    a.branch("s_cbranch_scc1 L_CLR8")
    a("s_mov_b64 exec, 0xffff")
    a("buffer_store_dwordx4 %s, v%d, s[8:11], s25 offen sc1" % (vr(ZR, 4), V16))
    a("s_mov_b64 exec, -1")
    a.label("L_CLR8")
    a("buffer_store_dwordx4 %s, v%d, s[8:11], s16 offen sc1" % (vr(ZR, 4), VHT))
    if not P["WB0"]:
        a("buffer_store_dwordx4 %s, v%d, s[8:11], s24 offen sc1" % (vr(ZR, 4), VHT))
    a("s_mov_b32 s14, 0x05040302")
    a("s_bitcmp1_b32 s2, 0")
    a("s_cselect_b32 s14, 0x07060504, s14")
    a("v_lshl_add_u32 v%d, v%d, 2, s12" % (VST, VH))
    a("v_mul_u32_u24 v%d, %d, v%d" % (VST, BS, VST))
    a("v_and_b32 v%d, 7, v%d" % (H + 4, VL))
    a("v_mul_u32_u24 v%d, 144, v%d" % (H + 4, H + 4))
    a("v_add_u32 v%d, v%d, v%d" % (VST, VST, H + 4))
    a("v_bfe_u32 v%d, v%d, 3, 2" % (H + 4, VL))
    a("v_lshl_add_u32 v%d, v%d, 3, v%d" % (VST, H + 4, VST))
    a("s_lshl_b32 s24, s12, 2")
    a("v_mov_b32 v%d, s24" % (WT + 6))
    a("v_lshrrev_b32 v%d, 2, v%d" % (H + 1, H))
    a("v_and_b32 v%d, 1, v%d" % (H + 2, H))
    a("v_lshlrev_b32 v%d, 4, v%d" % (VQT, H + 1))
    a("v_lshl_add_u32 v%d, v%d, 3, v%d" % (VQT, H + 2, VQT))
    a("v_bfe_u32 v%d, v%d, 1, 1" % (H + 3, H))
    a("v_mul_u32_u24 v%d, %d, v%d" % (H + 3, CS, H + 3))
    a("v_add_u32 v%d, v%d, v%d" % (VPW, VQT, H + 3))
    a("v_lshlrev_b32 v%d, 2, v%d" % (VSG, H + 1))
    a("v_lshlrev_b32 v%d, 4, v%d" % (VSH, H + 2))
    a("v_lshrrev_b32 v%d, 3, v%d" % (H + 4, H))
    a("v_add_u32 v%d, 31, v%d" % (H + 4, H + 4))
    a("v_and_b32 v%d, 31, v%d" % (H + 4, H + 4))
    a("v_lshrrev_b32 v%d, 2, v%d" % (H + 6, H + 4))
    a("v_mul_u32_u24 v%d, 144, v%d" % (VWR, H + 6))
    a("v_and_b32 v%d, 3, v%d" % (H + 4, H + 4))
    a("v_lshl_add_u32 v%d, v%d, 5, v%d" % (VWR, H + 4, VWR))
    a("v_bfe_u32 v%d, v%d, 1, 2" % (H + 4, H))
    a("v_lshl_add_u32 v%d, v%d, 3, v%d" % (VWR, H + 4, VWR))
    a("v_mul_u32_u24 v%d, %d, v%d" % (H + 4, 2 * BS, H + 2))
    a("v_add_u32 v%d, v%d, v%d" % (VWR, VWR, H + 4))
    a("v_and_b32 v%d, 48, v%d" % (H + 4, V16))
    a("v_lshl_add_u32 v%d, v%d, 15, v%d" % (VWS, H + 1, H + 4))
    a("v_lshlrev_b32 v%d, 12, v%d" % (H + 7, VL))
    a("s_lshl_b32 s18, s2, 4")
    a("s_add_u32 s18, s18, 0x%x" % FW)
    a("s_lshl_b32 s46, s2, 15")
    a("s_add_u32 s46, s46, 0x%x" % WBUF)
    a("s_and_b32 s47, s2, 7")
    a("s_lshl_b32 s47, s47, 13")
    a("s_add_u32 s47, s47, 0x%x" % FW)
    a("s_waitcnt lgkmcnt(0)")
    a("s_add_u32 s35, s34, 1")

    def sig_pack(R, D):
        for hf in range(2):
            b = R + 4 * hf
            a("v_lshl_or_b32 v%d, v%d, 8, v%d" % (D + 2 * hf, b + 1, b))
            a("v_lshl_or_b32 v%d, v%d, 16, v%d" % (D + 2 * hf, b + 2, D + 2 * hf))
            a("v_lshl_or_b32 v%d, v%d, 24, v%d" % (D + 2 * hf, b + 3, D + 2 * hf))
            a("v_mov_b32 v%d, s35" % (D + 2 * hf + 1))

    def last_arriver_store(tag, lf, soff):
        one_lane(a, "ds_add_rtn_u32 v%d, v%d, v%d offset:%d" % (H + 5, VZ, ONE, lf))
        a("s_waitcnt lgkmcnt(0)")
        a("v_readfirstlane_b32 s16, v%d" % (H + 5))
        a("s_cmp_lg_u32 s16, 3")
        a.branch("s_cbranch_scc1 %s" % tag)
        a("s_mov_b64 exec, 0xffff")
        a("buffer_store_dwordx4 %s, v%d, s[8:11], %s offen sc1" % (vr(48, 4), H + 7, soff))
        a("s_mov_b64 exec, -1")
        a.label(tag)

    def pq_stores(ty, lf, need):
        reads = []
        for it in range(4):
            off = (L_WSA, L_WSB)[ty] + it * 4 * BS
            reads.append("ds_read_b64 %s, v%d offset:%d" % (vr(SB + 4 * it, 2), VWR, off))
            reads.append("ds_read_b64 %s, v%d offset:%d" % (vr(SB + 4 * it + 2, 2), VWR, off + BS))
        a("s_add_u32 s17, s19, 0x%x" % (WBUF + 16384 * ty))
        lds_spec(a, "WS%d" % ty, VZ, H + 4, lf, need, reads)
        for it in range(4):
            a("s_waitcnt lgkmcnt(%d)" % (6 - 2 * it))
            a("s_add_u32 s16, s17, 0x%x" % (it * 64 * 32768))
            a("buffer_store_dwordx4 %s, v%d, s[8:11], s16 offen sc1" % (vr(SB + 4 * it, 4), VWS))

    def flag_poll(tag):
        FL = 160
        a("s_add_u32 s16, s47, 4096")
        a("s_mov_b32 s27, 0")
        a.label(tag)
        for q in range(8):
            a("buffer_load_dwordx4 %s, v%d, s[8:11], s%d offen offset:%d sc1" % (vr(FL + 4 * q, 4), V16, (47, 16)[q // 4], (q % 4) * 1024))
        a("s_waitcnt vmcnt(0)")
        M = FL + 32
        a("v_max3_u32 v%d, v%d, v%d, v%d" % (M, FL + 3, FL + 7, FL + 11))
        a("v_max_u32 v%d, v%d, v%d" % (M, M, FL + 15))
        for k in range(16):
            a("v_xor_b32 v%d, s35, v%d" % (FL + 2 * k + 1, FL + 2 * k + 1))
        and_or_tree(a, [FL + 4 * k + 1 for k in range(8)], H + 2, H + 3, False)
        and_or_tree(a, [FL + 4 * k + 3 for k in range(8)], H + 4, H + 3, False)
        a("v_lshrrev_b32 v%d, 8, v%d" % (H + 4, H + 4))
        a("v_or_b32 v%d, v%d, v%d" % (H + 2, H + 2, H + 4))
        a("v_cmp_ne_u32 vcc, 0, v%d" % (H + 2))
        poll_exit(a, tag, None, P["DPN"])
        a("v_and_b32 v%d, 0xff, v%d" % (M, M))
        a("s_cmp_ge_u32 s2, 128")
        a("s_cselect_b64 vcc, -1, 0")
        a("v_lshlrev_b32 v%d, 2, v%d" % (H + 1, VL))
        fill = ["v_cndmask_b32 v%d, v%d, v%d, vcc" % (FL + 4 * q + 1, FL + 4 * q, FL + 4 * q + 2) for q in range(8)]
        fill += ["ds_write_b32 v%d, v%d offset:%d" % (H + 1, FL + 4 * q + 1, L_SIGT + q * 256) for q in range(8)]
        rest = zipper(a, wave_allreduce_ops("v_max_u32", M, M + 1), fill, 2)
        for o in rest:
            a(o)
        a("v_max_u32 v%d, 0x61, v%d" % (M, M))
        a("v_min_u32 v%d, 0xdc, v%d" % (M, M))
        a("ds_write_b32 v%d, v%d offset:%d" % (VZ, M, LF_W))

    def pq_loads(ty):
        for g in range(4):
            a("s_add_u32 s16, s46, %d" % (ty * 16384 + g * 4096))
            a("buffer_load_dwordx4 %s, v%d, s[8:11], s16 offen sc1" % (vr(64 + 4 * g, 4), VHT))

    def pq_factors(ty):
        for g in range(4):
            a("ds_read_b32 v%d, v%d offset:%d" % (80 + g, VSG, L_SIGT + ty * 1024 + g * 256))
        a("s_sub_u32 s24, 127, s33")
        a("s_lshl_b32 s24, s24, 23")
        a("s_waitcnt lgkmcnt(0)")
        for g in range(4):
            a("v_lshrrev_b32 v%d, v%d, v%d" % (80 + g, VSH, 80 + g))
        for g in range(4):
            for u in range(2):
                a("v_bfe_u32 v%d, v%d, %d, 8" % (84 + 2 * g + u, 80 + g, 8 * u))
        for k in range(8):
            a("v_lshl_add_u32 v%d, v%d, 23, s24" % (84 + k, 84 + k))
        for k in range(8):
            a("v_cvt_pk_f16_f32 v%d, v%d, v%d" % (84 + k, 84 + k, 84 + k))
        for k in range(8):
            a("v_pk_mul_f16 v%d, v%d, v%d" % (92 + k, QT + k, 84 + k))

    def pq_process(ty, younger=0):
        LD, F, QF, TT = 64, 84, 92, 100
        a("v_add_u32 v%d, %d, v%d" % (H + 1, L_PQ[ty], VPW))
        for g in range(4):
            a("s_waitcnt vmcnt(%d)" % (3 - g + younger))
            o = TT + 8 * g
            for u in range(2):
                a("v_pk_mul_f16 v%d, v%d, v%d" % (o + u, LD + 4 * g + 2 * u, F + 2 * g + u))
                a("v_pk_mul_f16 v%d, v%d, v%d op_sel:[0,0] op_sel_hi:[1,0]" % (o + 6 + u, LD + 4 * g + 2 * u + 1, QF + 2 * g + u))
            for u in range(2):
                Qr = LD + 4 * g + 2 * u + 1
                a("v_pk_fma_f16 v%d, v%d, v%d, v%d op_sel:[1,1,0] op_sel_hi:[0,1,1] neg_lo:[1,0,0]" % (o + 2 + u, Qr, QF + 2 * g + u, o + 6 + u))
                a("v_pk_fma_f16 v%d, v%d, v%d, v%d op_sel:[1,1,0] op_sel_hi:[0,1,1] neg_hi:[1,0,0]" % (o + 4 + u, Qr, QF + 2 * g + u, o + 6 + u))
            for k in range(3):
                a("ds_write_b64 v%d, %s offset:%d" % (H + 1, vr(o + 2 * k, 2), k * 4096 + g * 1024))
        one_lane(a, "ds_add_u32 v%d, v%d offset:%d" % (VZ, ONE, LF_PQ))

    for hf in range(2):
        a("s_waitcnt vmcnt(%d)" % (13 - 4 * hf))
        if hf == 0:
            stamp(a, "WA loaded")
        for o in w_unit(a, WA + 16 * hf, 0, PF, PK, WT, VST, hf):
            a(o)
    one_lane(a, "ds_add_u32 v%d, v%d offset:%d" % (VZ, ONE, LF_WS))
    if P["WB0"] == 2:
        a("s_waitcnt vmcnt(1)")
        one_lane(a, "ds_add_u32 v%d, v%d offset:%d" % (VZ, ONE, LF_LD))
    pq_stores(0, LF_WS, 4)
    stamp(a, "PQA issued")
    a("s_waitcnt vmcnt(4)")
    for hf in range(2):
        for o in w_unit(a, WB + 16 * hf, 1, PF, PK, WT, VST, hf):
            a(o)
    a("s_waitcnt vmcnt(0)")
    one_lane(a, "ds_add_u32 v%d, v%d offset:%d" % (VZ, ONE, LF_WA))
    publish(a, "H_NOFN", VZ, ONE, 32, "s35")
    if P["HPRIO"]:
        a("s_setprio 0")
    stamp(a, "PQA acked")
    lds_wait(a, "HR", VZ, H + 1, LF_R, 4, "s16")
    for g in range(4):
        a("ds_read_b64 %s, v%d offset:%d" % (vr(QT + 2 * g, 2), VQT, L_QT + g * 1024))
    a("s_setprio 2")
    a("s_cmp_lg_u32 s3, 4")
    a.branch("s_cbranch_scc1 H_W0")
    lds_wait(a, "HNA", VZ, H + 1, LF_NA, 8, "s16")
    if P["DN"]:
        a("s_sleep %d" % P["DN"])
    flag_poll("H_POLLW")
    a.label("H_W0")
    lds_wait(a, "HW", VZ, H + 1, LF_W, 1, "s33", sleep=1)
    stamp(a, "FW seen")
    pq_loads(0)
    def bst():
        pq_stores(1, LF_WA, 4)
        a("s_lshl_b32 s16, s2, 12")
        a("s_add_u32 s16, s16, 0x%x" % (PART + MB))
        a("buffer_store_dwordx4 %s, v%d, s[8:11], s16 offen sc1" % (vr(ZR, 4), VHT))

    if P["BST"] == 0:
        bst()
    pq_factors(0)
    pq_process(0, 5 if P["BST"] == 0 else 0)
    a("s_setprio 0")
    stamp(a, "pqA")
    if P["BST"] == 1:
        bst()
    pq_factors(1)
    a("s_lshl_b32 s15, s33, 23")
    a("s_waitcnt vmcnt(0)")
    one_lane(a, "ds_add_u32 v%d, v%d offset:%d" % (VZ, ONE, LF_BS))
    stamp(a, "PQB acked")
    a("s_cmp_eq_u32 s3, 4")
    a.branch("s_cbranch_scc1 H_RED")
    lds_wait(a, "HH", VZ, H + 1, LF_H1, 1, "s16", sleep=2)
    a.label("H_B0")
    pq_loads(1)
    pq_process(1)
    stamp(a, "pqB")
    a("s_cmp_eq_u32 s3, 4")
    a.branch("s_cbranch_scc1 H_RED1")
    a("s_sub_u32 s16, s3, 5")
    a("s_lshl_b32 s24, s16, 10")
    a("s_lshl_b32 s17, s2, 14")
    a("s_add_u32 s17, s17, 0x%x" % DBUF)
    a("s_lshl_b32 s18, s2, 12")
    a("s_add_u32 s18, s18, 0x%x" % (PART + 2 * MB))
    for win in range(2):
        lds_wait(a, "HL%d" % win, VZ, H + 1, LF_L, 4 * (win + 1), "s16", sleep=2)
        a("s_add_u32 s25, s17, s24")
        a("buffer_store_dwordx4 %s, v%d, s[8:11], s25 offen sc1" % (vr(ZR, 4), V16))
        a("buffer_store_dwordx4 %s, v%d, s[8:11], s25 offen offset:3072 sc1" % (vr(ZR, 4), V16))
        a("s_add_u32 s25, s25, 6144")
        a("s_add_u32 s16, s17, 7168")
        a("s_min_u32 s25, s25, s16")
        a("buffer_store_dwordx4 %s, v%d, s[8:11], s25 offen sc1" % (vr(ZR, 4), V16))
        if win == 0:
            a("s_add_u32 s25, s18, s24")
            a("buffer_store_dwordx4 %s, v%d, s[8:11], s25 offen sc1" % (vr(ZR, 4), V16))
            a("buffer_store_dwordx4 %s, v%d, s[8:11], s18 offen offset:3072 sc1" % (vr(ZR, 4), V16))
            a("s_add_u32 s17, s17, 8192")
        a("s_waitcnt vmcnt(0)")
        one_lane(a, "ds_add_u32 v%d, v%d offset:%d" % (VZ, ONE, LF_C))
    if STAMPS:
        for k in range(6):
            a("s_mov_b32 s%d, 0" % (50 + _nst[0] + k))
    a.branch("s_branch L_FINAL")
    a.label("H_RED")
    SEL = 24
    a("v_bfe_u32 v%d, v%d, 1, 2" % (H + 1, VL))
    a("v_and_b32 v%d, 1, v%d" % (H + 2, VL))
    a("v_lshlrev_b32 v%d, 4, v%d" % (H + 2, H + 2))
    a("v_mov_b32 v%d, 0x3f80" % (H + 3))
    a("v_lshlrev_b32 v%d, v%d, v%d" % (H + 3, H + 2, H + 3))
    for d in range(4):
        a("v_cmp_eq_u32 vcc, %d, v%d" % (d, H + 1))
        a("v_cndmask_b32 v%d, 0, v%d, vcc" % (SEL + d, H + 3))
    a("v_and_b32 v%d, 7, v%d" % (VAS, VL))
    a("v_lshlrev_b32 v%d, 13, v%d" % (VAS, VAS))
    a("v_and_b32 v%d, 16, v%d" % (H + 1, VL))
    a("v_add_u32 v%d, v%d, v%d" % (VAS, VAS, H + 1))
    a("s_lshr_b32 s38, s2, 5")
    a("s_lshl_b32 s38, s38, 3")
    a("s_and_b32 s39, s2, 7")
    a("s_add_u32 s38, s38, s39")
    a("s_bfe_u32 s16, s2, 0x20003")
    a("s_lshl_b32 s39, s38, 2")
    a("s_add_u32 s39, s39, s16")
    a("s_lshl_b32 s39, s39, 5")
    a("s_add_u32 s39, s39, 0x%x" % AVEC)
    a("s_lshl_b32 s38, s38, 14")
    a("s_lshl_b32 s16, s16, 4")
    a("s_add_u32 s38, s38, s16")
    a("s_add_u32 s38, s38, 0x%x" % PART)
    a("s_mov_b32 s36, %s" % hexf(1.0 / 2048))
    for layer in range(3):
        ty = layer % 2
        PB, RD = 32, 48
        if layer == 1:
            a.branch("s_branch H_B0")
            a.label("H_RED1")
        if layer >= 1:
            lds_wait(a, "HC%d" % layer, VZ, H + 1, LF_C, 3 * layer, "s16", sleep=2)
        if layer == 0:
            a("s_sub_u32 s16, 254, s33")
            a("s_lshl_b32 s16, s16, 23")
            a("v_mov_b32 v8, s16")
            a("v_mul_f32 v8, v8, v8")
            a("v_mul_f32 v8, %s, v8" % hexf(EPS))
        lds_wait(a, "HPS%d" % layer, VZ, H + 1, LF_PS, 4 * (layer + 1), "s16", sleep=1)
        a("s_mov_b32 s27, 0")
        if P["D1"]:
            a("s_sleep %d" % P["D1"])
        a.label("H_POLL1_%d" % layer)
        for q in range(4):
            a("s_add_u32 s16, s38, %d" % (q * 4096 + layer * MB))
            a("buffer_load_dwordx4 %s, v%d, s[8:11], s16 offen sc1" % (vr(PB + 4 * q, 4), VPL))
        a("s_waitcnt vmcnt(0)")
        and_or_tree(a, range(PB, PB + 16), H + 1, H + 2, True)
        a("v_and_b32 v%d, 0x80008000, v%d" % (H + 1, H + 1))
        a("v_cmp_ne_u32 vcc, 0x80008000, v%d" % (H + 1))
        poll_exit(a, "H_POLL1_%d" % layer, None)
        for q in range(4):
            a("v_mfma_f32_16x16x32_bf16 %s, %s, %s, %s" % (vr(RD, 4), vr(SEL, 4), vr(PB + 4 * q, 4), "0" if q == 0 else vr(RD, 4)))
        a("v_mov_b32 v%d, %d" % (H + 1, layer + 1))
        for ctl in ("quad_perm:[1,0,3,2]", "quad_perm:[2,3,0,1]", "row_half_mirror", "row_mirror"):
            for r in range(4):
                a("v_add_f32_dpp v%d, v%d, v%d %s row_mask:0xf bank_mask:0xf" % (RD + r, RD + r, RD + r, ctl))
        for r in range(4):
            a("v_fma_f32 v%d, |v%d|, s36, v8" % (RD + r, RD + r))
        for r in range(4):
            a("v_rsq_f32 v%d, v%d" % (RD + r, RD + r))
        for r in range(4):
            a("v_mul_f32 v%d, 0.5, v%d" % (RD + r, RD + r))
        for r in range(4):
            a("v_or_b32 v%d, 0x80000000, v%d" % (RD + r, RD + r))
        a("s_mov_b64 exec, 0x00ff00ff")
        a("buffer_store_dwordx4 %s, v%d, s[8:11], s39 offen sc1" % (vr(RD, 4), VAS))
        a("s_mov_b64 exec, -1")
        a("ds_write_b32 v%d, v%d offset:%d" % (VZ, H + 1, LF_H1))
        a("s_add_u32 s39, s39, 0x10000")
        stamp(a, "hop1 done")
        stamp_val(a, "s27", "polls1")
    n_help = _nst[0]

    a.label("L_FINAL")
    if P.get("DIAG", -1) in (96, 97):
        a("s_cmp_lg_u32 s3, 6")
        a.branch("s_cbranch_scc1 L_NODG")
        srd(a, 44, 42, 256)
        a("v_mov_b32 v128, s50")
        a("v_not_b32 v129, v128")
        a("s_mov_b64 exec, 1")
        a("buffer_atomic_umax v128, v255, s[44:47], 0 offen sc1")
        a("buffer_atomic_umax v129, v255, s[44:47], 0 offen offset:4 sc1")
        a("s_mov_b64 exec, -1")
        a.label("L_NODG")
    _nst[0] = max(n_comp, n_help)
    DL, XL = 0, 8
    GAr, GAi, TW5, GB = 16, 24, 160, 48
    TR, TI, OP, XF = 64, 80, 96, 112
    T = 128
    a("v_lshlrev_b32 v%d, 6, v%d" % (T, VNU))
    a("v_lshl_add_u32 v%d, v%d, 5, v%d" % (T, VH, T))
    for u in range(2):
        a("buffer_load_dwordx4 %s, v%d, s[20:23], s26 offen offset:%d" % (vr(XL + 4 * u, 4), T, 16 * u))
    a("v_bfe_u32 v%d, v%d, 2, 1" % (T + 1, VNU))
    a("v_lshlrev_b32 v%d, 8, v%d" % (T + 1, T + 1))
    a("v_lshrrev_b32 v%d, 3, v%d" % (T + 2, VNU))
    a("v_lshl_add_u32 v%d, v%d, 6, v%d" % (T + 1, T + 2, T + 1))
    a("v_and_b32 v%d, 3, v%d" % (T + 2, VNU))
    a("v_lshl_add_u32 v%d, v%d, 4, v%d" % (T + 1, T + 2, T + 1))
    a("v_lshl_add_u32 v%d, v%d, 9, v%d" % (T + 1, VH, T + 1))
    for q in range(2):
        a("ds_read_b128 %s, v%d offset:%d" % (vr(GAr + 4 * q, 4), T + 1, L_FR + q * 1024))
        a("ds_read_b128 %s, v%d offset:%d" % (vr(GAi + 4 * q, 4), T + 1, L_FI + q * 1024))
    for q in range(4):
        a("ds_read_b128 %s, v%d offset:%d" % (vr(TW5 + 4 * q, 4), T + 1, L_TW + q * 1024))
        a("ds_read_b128 %s, v%d offset:%d" % (vr(GB + 4 * q, 4), V16, L_FR + q * 1024))
    srd(a, 44, 40, XBYTES)
    a("v_lshrrev_b32 v%d, 1, v%d" % (T + 2, VT))
    a("v_lshlrev_b32 v%d, 6, v%d" % (T + 2, T + 2))
    a("v_and_b32 v%d, 16, v%d" % (T + 3, V16))
    a("v_add_u32 v%d, v%d, v%d" % (T + 2, T + 2, T + 3))
    a("s_lshr_b32 s24, s2, 1")
    a("s_lshl_b32 s24, s24, 15")
    a("s_and_b32 s17, s2, 1")
    a("s_lshl_b32 s17, s17, 5")
    a("s_add_u32 s24, s24, s17")
    a("s_add_u32 s24, s24, 0x%x" % DBUF)
    a("s_add_u32 s17, s24, 16384")
    a("s_mov_b32 s18, 0xa8002800")
    a("v_cmp_eq_u32 vcc, 0, v%d" % VH)
    a("s_waitcnt lgkmcnt(0)")
    a("v_pk_mul_f16 v%d, v%d, s18" % (T + 3, GAr + 1))
    a("v_cndmask_b32 v%d, v%d, v%d, vcc" % (TW5, TW5, T + 3))
    lds_wait(a, "FD", 255, T + 3, LF_DS, 4, "s16", sleep=1)
    a("s_mov_b32 s27, 0")
    if P["D5"]:
        a("s_sleep %d" % P["D5"])
    a.label("F_POLL")
    a("buffer_load_dwordx4 %s, v%d, s[8:11], s24 offen sc1" % (vr(DL, 4), T + 2))
    a("buffer_load_dwordx4 %s, v%d, s[8:11], s17 offen sc1" % (vr(DL + 4, 4), T + 2))
    a("s_waitcnt vmcnt(2)")
    for q in range(8):
        a("v_lshlrev_b32 v%d, 16, v%d" % (XF + 2 * q, XL + q))
        a("v_and_b32 v%d, 0xffff0000, v%d" % (XF + 2 * q + 1, XL + q))
    a("s_waitcnt vmcnt(0)")
    and_or_tree(a, range(DL, DL + 8), T + 3, T + 4, True)
    a("v_and_b32 v%d, 1, v%d" % (T + 3, T + 3))
    a("v_cmp_eq_u32 vcc, 0, v%d" % (T + 3))
    poll_exit(a, "F_POLL", None)
    stamp(a, "D loaded")
    stamp_val(a, "s27", "pollsD")
    for it in range(2):
        for ih in range(2):
            a("ds_write2st64_b32 v%d, v%d, v%d offset0:%d offset1:%d" % (246, DL + 4 * it + 2 * ih, DL + 4 * it + 2 * ih + 1, 16 * ih + 4 * it, 16 * ih + 8 + 4 * it))
    a("s_waitcnt lgkmcnt(0)")
    a("s_barrier")
    for t in range(2):
        a("ds_read_b128 %s, v250 offset:%d" % (vr(DL + 4 * t, 4), t * 1024))
    for t in range(2):
        a("s_waitcnt lgkmcnt(%d)" % (1 - t))
        a("v_mfma_f32_32x32x16_f16 %s, %s, %s, %s" % (vr(TR, 16), vr(DL + 4 * t, 4), vr(GAr + 4 * t, 4), "0" if t == 0 else vr(TR, 16)))
        a("v_mfma_f32_32x32x16_f16 %s, %s, %s, %s" % (vr(TI, 16), vr(DL + 4 * t, 4), vr(GAi + 4 * t, 4), "0" if t == 0 else vr(TI, 16)))
    valu = []
    for t in range(4):
        for p in range(4):
            r = 4 * t + p
            valu.append("v_cvt_pk_f16_f32 v%d, v%d, v%d" % (TI + r, TR + r, TI + r))
        ops = [cmul_ops(OP + 4 * t + p, TI + 4 * t + p, TW5 + 4 * t + p) for p in range(4)]
        valu += [o[0] for o in ops] + [o[1] for o in ops]
    DO = 144
    mfs = [(12 * (t + 1) + 2, "v_mfma_f32_32x32x16_f16 %s, %s, %s, %s" % (vr(DO, 16), vr(OP + 4 * t, 4), vr(GB + 4 * t, 4), "0" if t == 0 else vr(DO, 16))) for t in range(4)]
    interleave(a, valu, mfs)
    for r in range(16):
        a("v_fmac_f32 v%d, s15, v%d" % (XF + r, DO + r))
    for q in range(8):
        a("v_cvt_pk_bf16_f32 v%d, v%d, v%d" % (OP + q, XF + 2 * q, XF + 2 * q + 1))
    for u in range(2):
        a("buffer_store_dwordx4 %s, v%d, s[44:47], s26 offen offset:%d%s" % (vr(OP + 4 * u, 4), T, 16 * u, ("", " sc1", " nt", " sc0 sc1")[P["OUTF"]]))
    a("s_or_b32 s16, s2, s3")
    a("s_cmp_lg_u32 s16, 0")
    a.branch("s_cbranch_scc1 F_NOEP")
    a("v_mov_b32 v%d, s36" % (T + 3))
    a("s_mov_b32 s16, 0x%x" % EPOCH)
    one_lane(a, "buffer_store_dword v%d, v255, s[8:11], s16 offen" % (T + 3))
    a.label("F_NOEP")
    stamp(a, "out issued")
    if STAMPS:
        a("s_waitcnt vmcnt(0)")
    stamp(a, "out done")
    stamp_dump(a, _nst[0], 180)
    if P.get("DIAG", -1) >= 0:
        a("s_cmp_lg_u32 s2, 37")
        a.branch("s_cbranch_scc1 L_END")
        a("s_cmp_lg_u32 s3, %d" % P.get("DIAGW", 0))
        a.branch("s_cbranch_scc1 L_END")
        a("s_waitcnt vmcnt(0)")
        a("s_memrealtime s[48:49]")
        a("s_waitcnt lgkmcnt(0)")
        if P["DIAG"] == 99:
            a("s_mov_b32 s52, s48")
        if P["DIAG"] == 98:
            a("s_mov_b32 s52, s50")
        a("s_sub_u32 s52, s52, s50")
        if P["DIAG"] in (96, 97):
            a("s_load_dwordx2 s[56:57], s[42:43], 0 glc")
            a("s_waitcnt lgkmcnt(0)")
            a("s_not_b32 s57, s57")
            if P["DIAG"] == 97:
                a("s_sub_u32 s52, s56, s57")
            else:
                a("s_sub_u32 s52, s50, s57")
            a("s_lshl_b32 s52, s52, 2")
        a("s_add_u32 s52, s52, 1000")
        a("s_min_u32 s52, s52, 10000")
        a("s_mov_b32 s53, s48")
        a.label("L_DSPIN")
        a("s_memrealtime s[48:49]")
        a("s_waitcnt lgkmcnt(0)")
        a("s_sub_u32 s54, s48, s53")
        a("s_cmp_lt_u32 s54, s52")
        a.branch("s_cbranch_scc1 L_DSPIN")
    a.label("L_END")
    a("s_endpgm")


def main(out):
    a = Asm()
    a.raw("; @launch grid=(256,1,1) block=(512,1,1) lds=%d" % LDS_BYTES)
    a.raw('.amdgcn_target "amdgcn-amd-amdhsa--gfx950"')
    a.raw(".text")
    gen(a)
    a.raw('.section .rodata,"a"')
    a.raw(".p2align 6")
    a.raw(""".amdhsa_kernel %s
  .amdhsa_next_free_vgpr 256
  .amdhsa_next_free_sgpr %d
  .amdhsa_accum_offset 256
  .amdhsa_group_segment_fixed_size 0
  .amdhsa_kernarg_size 72
  .amdhsa_user_sgpr_count 2
  .amdhsa_user_sgpr_kernarg_segment_ptr 1
  .amdhsa_system_sgpr_workgroup_id_x 1
.end_amdhsa_kernel""" % (KNAME, 100))
    open(out, "w").write(a.text())
    print("instructions:", a.count, "nop states:", a.nops, "lds", LDS_BYTES)


if __name__ == "__main__":
    for arg in sys.argv[2:]:
        if arg == "stamps":
            STAMPS = True
        elif "=" in arg:
            k, v = arg.split("=")
            P[k] = int(v)
    main(sys.argv[1])
```
